```python
import torch

def _softmax(x, axis=-1):
    return torch.softmax(x, dim=axis)

def _gelu(x):
    return torch.nn.functional.gelu(x, approximate='tanh')

def _silu(x):
    return torch.nn.functional.silu(x)

def _sigmoid(x):
    return torch.sigmoid(x)

def _layernorm(x, axis=-1, eps=1e-05):
    m = x.mean(dim=axis, keepdim=True)
    v = x.var(dim=axis, keepdim=True, unbiased=False)
    return (x - m) / torch.sqrt(v + eps)

def _scatter_add(tgt, idx, src, axis=0):
    return tgt.clone().index_add_(axis, idx, src)

def _segment_sum(src, seg, n):
    out = torch.zeros((n,) + src.shape[1:], dtype=src.dtype)
    return out.index_add_(0, seg, src)

def _pad(x, pw):
    flat = tuple((v for pair in reversed(pw) for v in pair))
    return torch.nn.functional.pad(x, flat)
kernel_name = 'adaLN_cond__spectral_gfnet__dense_activation_silu__prompt'

def setup_inputs():

    _w = lambda a: (lambda t: t.to(torch.bfloat16) if t.is_floating_point() else t)(torch.as_tensor(a))

    def _A_setup():
        B, S, D = (1, 2048, 512)
        Df = D // 2 + 1
        return {'x': _w((lambda *s: torch.randn(*s, dtype=torch.bfloat16) * 0.05)(B, S, D)), 'w_r': _w((lambda *s: torch.randn(*s, dtype=torch.bfloat16) * 1.6)(S, Df) * 0.02), 'w_i': _w((lambda *s: torch.randn(*s, dtype=torch.bfloat16) * 1.6)(S, Df) * 0.02)}
    _A_in = _A_setup()

    def _B_setup():
        B, S, D, F = (1, 2048, 512, 1376)
        return {'x': _w((lambda *s: torch.randn(*s, dtype=torch.bfloat16) * 0.05)(B, S, D)), 'w1': _w((lambda *s: torch.randn(*s, dtype=torch.bfloat16) * 0.8)(D, F) * D ** (-0.5)), 'w2': _w((lambda *s: torch.randn(*s, dtype=torch.bfloat16) * 0.2)(F, D) * F ** (-0.5))}
    _B_in = _B_setup()
    return {'A_x': _A_in['x'], 'A_w_r': _A_in['w_r'], 'A_w_i': _A_in['w_i'], 'B_x': _B_in['x'], 'B_w1': _B_in['w1'], 'B_w2': _B_in['w2'], 'c': _w((lambda *s: torch.randn(*s, dtype=torch.bfloat16) * 0.2)(1, 512) * 8.0), 'w_mod': _w((lambda *s: torch.randn(*s, dtype=torch.bfloat16) * 0.2)(512, 6 * 512) * 512 ** (-0.5) * 8.0)}

def reference(A_x, A_w_r, A_w_i, B_x, B_w1, B_w2, c, w_mod):

    def _A_ref(x, w_r, w_i):
        B, S, D = x.shape
        X = (lambda x, axes=(-2, -1): torch.fft.rfft2(x.float(), dim=axes))(x, axes=(-2, -1))
        W = w_r + 1j * w_i
        X = X * W
        y = (lambda x, s, axes=(-2, -1): torch.fft.irfft2(x, s=s, dim=axes).to(torch.bfloat16))(X, (S, D), axes=(-2, -1))
        return y

    def _B_ref(x, w1, w2):
        h = torch.einsum('bsd,df->bsf', x, w1)
        h = _silu(h)
        out = torch.einsum('bsf,fd->bsd', h, w2)
        return out
    x = A_x
    mod = (_silu(c) @ w_mod).reshape(c.shape[0], 6, 1, -1)
    sa, ca, ga, sb, cb, gb = (mod[:, 0].clone(), mod[:, 1].clone(), mod[:, 2].clone(), mod[:, 3].clone(), mod[:, 4].clone(), mod[:, 5].clone())
    h = _layernorm(x, axis=-1) * (1 + ca) + sa
    x = x + ga * _A_ref(h, A_w_r, A_w_i)
    h = _layernorm(x, axis=-1) * (1 + cb) + sb
    x = x + gb * _B_ref(h, B_w1, B_w2)
    return x
```

```python
import re


class Reg:
    def __init__(self, kind, base, n=1):
        self.kind, self.base, self.n = kind, base, n

    def __getitem__(self, i):
        if isinstance(i, slice):
            lo = 0 if i.start is None else i.start
            hi = self.n if i.stop is None else i.stop
            assert 0 <= lo < hi <= self.n, (lo, hi, self.n)
            return Reg(self.kind, self.base + lo, hi - lo)
        assert 0 <= i < self.n, (i, self.n)
        return Reg(self.kind, self.base + i, 1)

    def __len__(self):
        return self.n

    def __iter__(self):
        return (self[i] for i in range(self.n))

    def __str__(self):
        if self.n == 1:
            return f"{self.kind}{self.base}"
        return f"{self.kind}[{self.base}:{self.base + self.n - 1}]"

    __repr__ = __str__

    def __format__(self, spec):
        return str(self)


class Alloc:
    def __init__(self, kind, lo, hi):
        self.kind, self.lo, self.hi = kind, lo, hi
        self.used = [False] * hi
        self.high = lo

    def get(self, n=1, align=None):
        if align is None:
            align = 1 if n == 1 else (2 if self.kind != 's' else (2 if n == 2 else 4))
        b = self.lo
        while True:
            b = (b + align - 1) // align * align
            if b + n > self.hi:
                raise RuntimeError(f"out of {self.kind} registers (need {n})")
            if not any(self.used[b:b + n]):
                break
            b += 1
        for i in range(b, b + n):
            self.used[i] = True
        self.high = max(self.high, b + n)
        return Reg(self.kind, b, n)

    def free(self, *regs):
        for r in regs:
            for i in range(r.base, r.base + r.n):
                assert self.used[i], f"double free {r}"
                self.used[i] = False


_REG_RE = re.compile(r"^(-|\|)?(abs\()?-?([vas])(\d+|\[(\d+):(\d+)\])\)?\|?$")


def _regs_of(tok):
    tok = tok.strip()
    if tok in ("vcc", "vcc_lo", "vcc_hi"):
        return {("x", "vcc")}
    if tok in ("exec", "exec_lo", "exec_hi"):
        return {("x", "exec")}
    if tok == "m0":
        return {("x", "m0")}
    m = _REG_RE.match(tok)
    if not m:
        return set()
    k = m.group(3)
    if m.group(5) is not None:
        return {(k, i) for i in range(int(m.group(5)), int(m.group(6)) + 1)}
    return {(k, int(m.group(4)))}


TRANS = ("v_exp_f32", "v_log_f32", "v_rcp_f32", "v_rsq_f32", "v_sqrt_f32", "v_sin_f32", "v_cos_f32",
         "v_rcp_iflag_f32")
NO_DST_S = ("s_cmp", "s_waitcnt", "s_barrier", "s_branch", "s_cbranch", "s_nop", "s_setprio", "s_sleep",
            "s_endpgm", "s_bitcmp", "s_setreg", "s_sendmsg", "s_setpc")


class Ins:
    def __init__(self, text):
        self.text = text
        t = text.split(";")[0].strip()
        parts = t.split(None, 1)
        self.op = parts[0]
        rest = parts[1] if len(parts) > 1 else ""
        ops, depth, cur = [], 0, ""
        for ch in rest:
            if ch in "[(":
                depth += 1
            if ch in "])":
                depth -= 1
            if ch == "," and depth == 0:
                ops.append(cur.strip())
                cur = ""
            else:
                cur += ch
        if cur.strip():
            ops.append(cur.strip())
        self.mods = ""
        if ops:
            sp = ops[-1].split(None, 1)
            ops[-1] = sp[0]
            if len(sp) > 1:
                self.mods = sp[1]
        self.ops = ops
        op = self.op
        for suf in ("_e32", "_e64", "_dpp", "_sdwa"):
            if op.endswith(suf):
                op = op[: -len(suf)]
        self.base = op
        self.is_mfma = op.startswith("v_mfma")
        self.is_valu = op.startswith("v_") and not self.is_mfma
        self.is_salu = op.startswith("s_")
        self.is_vmem = op.startswith(("buffer_", "global_", "flat_"))
        self.is_ds = op.startswith("ds_")
        self.is_trans = op in TRANS
        self.is_dpp = any(k in self.mods for k in ("row_", "quad_perm", "wave_", "row_bcast")) and self.is_valu
        self.is_perm = op.startswith("v_permlane")
        self.is_lane = op in ("v_readlane_b32", "v_readfirstlane_b32", "v_writelane_b32")
        self.is_ldsdma = self.is_vmem and (" lds" in " " + self.mods or "_lds_" in op)
        R = [_regs_of(o) for o in ops]
        self.dst, self.src = set(), set()
        self.store_data = set()
        self.srcA = self.srcB = self.srcC = set()
        if self.is_mfma:
            self.dst = R[0]
            self.srcA, self.srcB, self.srcC = R[1], R[2], R[3]
            self.src = R[1] | R[2] | R[3]
            self.passes = 8 if "32x32x16" in op or "32x32x8" in op else 4
            assert "16x16x32" in op or "32x32x16" in op, op
        elif self.is_valu:
            if self.is_perm and "swap" in op:
                self.dst = R[0] | R[1]
                self.src = R[0] | R[1]
            elif op in ("v_add_co_u32", "v_sub_co_u32", "v_addc_co_u32", "v_subb_co_u32", "v_mad_u64_u32",
                        "v_div_scale_f32"):
                self.dst = R[0] | R[1]
                self.src = set().union(*R[2:])
            elif op == "v_nop":
                pass
            else:
                self.dst = R[0]
                self.src = set().union(*R[1:]) if len(R) > 1 else set()
                if op.startswith(("v_fmac", "v_pk_fmac", "v_dot2c", "v_writelane")) or self.is_dpp:
                    self.src |= R[0]
                if op.startswith("v_cmpx"):
                    self.dst |= {("x", "exec")}
        elif self.is_vmem:
            if op.startswith("buffer_"):
                if op.startswith(("buffer_wbl2", "buffer_inv")):
                    pass
                elif self.is_ldsdma:
                    self.src = set().union(*R) | {("x", "m0")}
                elif "load" in op:
                    self.dst = R[0]
                    self.src = set().union(*R[1:])
                else:
                    self.src = set().union(*R)
                    self.store_data = R[0]
                    if "atomic" in op and "sc0" in self.mods:
                        self.dst = R[0]
            else:
                if self.is_ldsdma:
                    self.src = set().union(*R) | {("x", "m0")}
                elif "load" in op:
                    self.dst = R[0]
                    self.src = set().union(*R[1:])
                elif "atomic" in op and "sc0" in self.mods:
                    self.dst = R[0]
                    self.src = set().union(*R[1:])
                else:
                    self.src = set().union(*R)
                    self.store_data = R[1]
        elif self.is_ds:
            if op.startswith(("ds_read", "ds_bpermute", "ds_permute", "ds_swizzle")) or "_rtn" in op:
                self.dst = R[0]
                self.src = set().union(*R[1:])
            else:
                self.src = set().union(*R)
                self.store_data = set().union(*R[1:])
        elif self.is_salu:
            if op.startswith(NO_DST_S):
                self.src = set().union(*R) if R else set()
            else:
                self.dst = R[0]
                self.src = set().union(*R[1:]) if len(R) > 1 else set()
                if "saveexec" in op:
                    self.dst |= {("x", "exec")}
        self.states = 1
        if op == "s_nop":
            self.states = int(ops[0], 0) + 1
        self.wide_store = len(self.store_data) >= 3


def _need(prod, cons):
    n = 0
    pd = prod.dst
    if prod.is_valu:
        sg = {r for r in pd if r[0] in ("s", "x")}
        vg = {r for r in pd if r[0] in ("v", "a")}
        if sg:
            if cons.is_vmem and (sg & cons.src):
                n = max(n, 5)
            if (cons.is_valu or cons.is_mfma) and (sg & cons.src):
                n = max(n, 4 if cons.is_lane else 2)
            if ("x", "exec") in sg:
                if cons.is_dpp:
                    n = max(n, 5)
                if cons.is_lane or cons.is_perm or cons.is_mfma:
                    n = max(n, 4)
                if cons.is_valu:
                    n = max(n, 2)
        if vg & cons.src:
            if cons.is_dpp or cons.is_perm or cons.is_mfma:
                n = max(n, 2)
            if cons.is_lane:
                n = max(n, 1)
            if prod.is_trans and not cons.is_trans:
                n = max(n, 1)
            if "op_sel" in prod.mods and not prod.base.startswith("v_pk") or "dst_sel" in prod.mods:
                n = max(n, 1)
    if prod.is_salu and ("x", "m0") in pd and ("x", "m0") in cons.src and (cons.is_vmem or cons.is_ds):
        n = max(n, 1)
    if prod.wide_store and (prod.store_data & cons.dst):
        n = max(n, 2 if (cons.is_valu or cons.is_mfma) else 1)
    if prod.is_mfma:
        p = prod.passes
        if cons.is_mfma:
            if pd & cons.srcC:
                if not (pd == cons.srcC and cons.passes == p):
                    n = max(n, p + 2)
            if pd & (cons.srcA | cons.srcB):
                n = max(n, p + 4)
            if (pd & cons.dst) and not (pd == cons.srcC and cons.passes == p):
                n = max(n, p + 4)
        elif cons.is_valu or cons.is_vmem or cons.is_ds:
            if pd & (cons.src | cons.dst):
                n = max(n, p + 4)
            if cons.is_valu and (prod.srcC & cons.dst):
                n = max(n, p - 1)
            if (cons.is_vmem or cons.is_ds) and (prod.srcC & cons.dst):
                n = max(n, p - 1)
    return n


MAXW = 14


class Kernel:
    def __init__(self, name, nsgpr=100, vlimit=256, alimit=0):
        self.name = name
        self.lines = []
        self.v = Alloc("v", 1, vlimit)
        self.s = Alloc("s", 3, nsgpr)
        self.a = Alloc("a", 0, max(alimit, 1))
        self.nlabel = 0
        self.nops_inserted = 0
        self.hook = None

    def __call__(self, text):
        for ln in text.split("\n"):
            ln = ln.strip()
            if not ln:
                continue
            if ln.startswith(";"):
                self.lines.append(("c", ln))
            elif ln.endswith(":"):
                self.lines.append(("l", ln[:-1]))
            elif ln.startswith("."):
                self.lines.append(("d", ln))
            else:
                self.lines.append(("i", ln))
                if self.hook:
                    self.hook(ln)

    def label(self, hint="L"):
        self.nlabel += 1
        return f"{self.name}_{hint}{self.nlabel}"

    def finalize(self):
        items = [(k, Ins(t) if k == "i" else t) for k, t in self.lines]
        label_state = {}
        pads = {}

        def merge(h1, h2):
            d = {}
            for ins, dist in h1 + h2:
                k = id(ins)
                if k not in d or dist < d[k][1]:
                    d[k] = (ins, dist)
            return list(d.values())

        for _ in range(6):
            changed = False
            hist = []
            for idx, (k, it) in enumerate(items):
                if k == "l":
                    hist = merge(hist, label_state.get(it, []))
                    continue
                if k != "i":
                    continue
                need = 0
                for p, dist in hist:
                    w = _need(p, it)
                    if w > dist:
                        need = max(need, w - dist)
                have = pads.get(idx, 0)
                if need > have:
                    pads[idx] = need
                    changed = True
                adv = pads.get(idx, 0) + it.states
                hist = [(p, d + adv) for p, d in hist if d + adv < MAXW]
                hist.append((it, 0))
                if it.base.startswith(("s_cbranch", "s_branch")):
                    tgt = it.ops[0]
                    old = label_state.get(tgt, [])
                    new = merge(old, hist)
                    if sorted((id(a), b) for a, b in new) != sorted((id(a), b) for a, b in old):
                        label_state[tgt] = new
                        changed = True
                    if it.base == "s_branch":
                        hist = []
                if it.base == "s_endpgm":
                    hist = []
            if not changed:
                break
        out = []
        self.nops_inserted = 0
        for idx, (k, it) in enumerate(items):
            if k == "l":
                out.append(f"{it}:")
            elif k in ("c", "d"):
                out.append(f"    {it}")
            else:
                p = pads.get(idx, 0)
                if p:
                    self.nops_inserted += p
                    out.append(f"    s_nop {p - 1}")
                out.append(f"    {it.text}")
        return "\n".join(out)

    def emit(self, lds_static=0):
        body = self.finalize()
        nv = self.v.high
        na = self.a.high if any(self.a.used) or self.a.high > 0 else 0
        acc_off = max(4, (nv + 3) // 4 * 4)
        nfv = acc_off + na if na else nv
        ns = max(self.s.high, 8)
        txt = f""".text
.globl {self.name}
.p2align 8
.type {self.name},@function
{self.name}:
{body}
"""
        desc = f""".section .rodata,"a"
.p2align 6
.amdhsa_kernel {self.name}
  .amdhsa_next_free_vgpr {nfv}
  .amdhsa_next_free_sgpr {ns}
  .amdhsa_accum_offset {acc_off}
  .amdhsa_group_segment_fixed_size 0
  .amdhsa_kernarg_size 88
  .amdhsa_user_sgpr_count 2
  .amdhsa_user_sgpr_kernarg_segment_ptr 1
  .amdhsa_system_sgpr_workgroup_id_x 1
  .amdhsa_float_denorm_mode_32 3
  .amdhsa_float_denorm_mode_16_64 3
.end_amdhsa_kernel
"""
        self.nvgpr, self.nfv = nv, nfv
        return txt, desc


def interleave(main, fill, ratio=None):
    out = []
    n, m = len(main), len(fill)
    j = 0
    for i, x in enumerate(main):
        out.append(x)
        tgt = (i + 1) * m // n
        while j < tgt:
            out.append(fill[j])
            j += 1
    out.extend(fill[j:])
    return out
```

```python
import struct
import sys

sys.path.insert(0, 'work')
from asmgen import Kernel, Reg, interleave

NAME = "adaLN_cond__spectral_gfnet__dense_activation_silu__prompt_kernel"

MODG = 0x0000
MODN = 0x2000
WT = 0x100000
Z1 = 0x400000
Y2 = 0x600000
H2 = 0x800000
X1 = 0xA00000
W2F = 0xC00000
H1 = 0x1000000
STAMP = 0x1600000
WS_SIZE = 0x1700000
OOB = 0x7F000000

L_W1 = 0
L_XS = 98304
L_R1 = L_XS + 4 * 2304
L_R2 = L_R1 + 8704
L_RED = L_R2 + 10240
LDS_SIZE = L_RED + 512

LOG2E = 1.4426950408889634
SPIN_MAX = 1 << 17


def f2h(x):
    return "0x%08x" % struct.unpack("<I", struct.pack("<f", x))[0]


class Gen:
    def __init__(self, stop=99, stamps=False):
        self.k = Kernel(NAME, nsgpr=100, vlimit=256, alimit=256)
        self.stop = stop
        self.stamps = stamps
        self.nstamp = 0

    def V(self, n=1, align=None):
        return self.k.v.get(n, align)

    def S(self, n=1, align=None):
        return self.k.s.get(n, align)

    def fv(self, *r):
        self.k.v.free(*r)

    def fs(self, *r):
        self.k.s.free(*r)

    def stamp(self):
        if not self.stamps:
            return
        k = self.k
        r = self.S(2)
        self.sST.append(r)
        k(f"s_memtime {r}")
        self.nstamp += 1

    def ang(self, dst, mul, K, base):
        k = self.k
        if K == 0:
            k(f"v_mov_b32 {dst}, {base}")
        elif K == 1:
            k(f"v_add_f32 {dst}, {mul}, {base}")
        else:
            k(f"v_fmamk_f32 {dst}, {mul}, {f2h(float(K))}, {base}")

    def cmul_pk(self, outr, outi, ar, ai, tc, ts, conj, tmp):
        k = self.k
        k(f"v_pk_mul_f32 {tmp[0:2]}, {ar}, {tc}")
        k(f"v_pk_mul_f32 {tmp[2:4]}, {ai}, {tc}")
        if conj:
            k(f"v_pk_fma_f32 {tmp[0:2]}, {ai}, {ts}, {tmp[0:2]}")
            k(f"v_pk_fma_f32 {outi}, {ar}, {ts}, {tmp[2:4]} neg_lo:[1,0,0] neg_hi:[1,0,0]")
        else:
            k(f"v_pk_fma_f32 {tmp[0:2]}, {ai}, {ts}, {tmp[0:2]} neg_lo:[1,0,0] neg_hi:[1,0,0]")
            k(f"v_pk_fma_f32 {outi}, {ar}, {ts}, {tmp[2:4]}")
        if outr is not None:
            k(f"v_pk_mov_b32 {outr}, {tmp[0:2]}, {tmp[0:2]} op_sel:[0,1]")

    def timeout_block(self, code):
        k = self.k
        t = self.vT0
        k(f"s_mov_b64 exec, 1")
        k(f"v_mov_b32 {t}, {code}")
        k(f"buffer_store_dword {t}, off, {self.sDBG}, 0 offset:{4 * code}")
        k("s_endpgm")

    def row_allsum(self, regs):
        k = self.k
        for sh in (1, 2, 4, 8):
            for r in regs:
                k(f"v_add_f32_dpp {r}, {r}, {r} row_ror:{sh} row_mask:0xf bank_mask:0xf")

    def wave_sum63(self, regs):
        k = self.k
        self.row_allsum(regs)
        for r in regs:
            k(f"v_add_f32_dpp {r}, {r}, {r} row_bcast:15 row_mask:0xa bank_mask:0xf")
        for r in regs:
            k(f"v_add_f32_dpp {r}, {r}, {r} row_bcast:31 row_mask:0xc bank_mask:0xf")

    def finish(self):
        k = self.k
        if self.stamps:
            t = self.V(2, 2)
            k("s_waitcnt lgkmcnt(0)")
            k(f"s_lshl_b32 {self.sT0}, s2, 10")
            k(f"s_lshl_b32 {self.sT1}, {self.sW}, 8")
            k(f"s_add_u32 {self.sT0}, {self.sT0}, {self.sT1}")
            k(f"s_add_u32 {self.sT0}, {self.sT0}, {STAMP}")
            k("s_mov_b64 exec, 1")
            for i in range(self.nstamp):
                k(f"v_mov_b32 {t[0]}, {self.sST[i][0]}")
                k(f"buffer_store_dword {t[0]}, off, {self.sWS}, {self.sT0} offset:{4 * i}")
            k(f"s_memrealtime {self.sST[0]}")
            k("s_waitcnt lgkmcnt(0)")
            k(f"v_mov_b32 {t[0]}, {self.sST[0][0]}")
            k(f"buffer_store_dword {t[0]}, off, {self.sWS}, {self.sT0} offset:{4 * 31}")
            k(f"v_mov_b32 {t[0]}, {self.sRT0[0]}")
            k(f"buffer_store_dword {t[0]}, off, {self.sWS}, {self.sT0} offset:{4 * 30}")
            self.fv(t)
        k("s_endpgm")

    def prologue(self):
        k = self.k
        S, V = self.S, self.V
        k("s_cmp_ge_u32 s2, 256")
        k("s_cbranch_scc1 L_exit")
        names = ["sX", "sWR", "sWI", None, "sW1", "sW2", "sC", "sWM", "sOUT", "sDBG", "sWS"]
        sizes = [2097152, 2048 * 514, 2048 * 514, 0, 512 * 2752, 1376 * 1024, 1024, 512 * 6144, 2097152, 256,
                 WS_SIZE]
        order = [7, 6, 0, 10, 9, 1, 2, 5, 4, 8]
        for i in order:
            setattr(self, names[i], S(4))
            k(f"s_load_dwordx2 {getattr(self, names[i])[0:2]}, s[0:1], {8 * i}")
        if self.stamps:
            self.sST = []
            self.sRT0 = S(2)
            k(f"s_memrealtime {self.sRT0}")
        self.stamp()
        self.sPC = S(2)
        k(f"s_getpc_b64 {self.sPC}")
        k("L_pc:")
        self.sG, self.sCB, self.sW, self.sXc, self.sY = S(), S(), S(), S(), S()
        self.sT0, self.sT1, self.sT2, self.sT3 = S(), S(), S(), S()
        self.sEX = S(2)
        self.sSpin = S()
        self.vL = V()
        self.vT0 = V()
        self.vL16 = V()
        self.vTid16 = V()
        k(f"v_lshrrev_b32 {self.vT0}, 6, v0")
        k(f"v_and_b32 {self.vL}, 63, v0")
        k(f"v_readfirstlane_b32 {self.sW}, {self.vT0}")
        k(f"s_and_b32 {self.sXc}, s2, 7")
        k(f"s_lshr_b32 {self.sY}, s2, 3")
        k(f"s_lshl_b32 {self.sG}, {self.sXc}, 5")
        k(f"s_add_u32 {self.sG}, {self.sG}, {self.sY}")
        k(f"s_lshr_b32 {self.sT0}, {self.sY}, 4")
        k(f"s_lshl_b32 {self.sT0}, {self.sT0}, 3")
        k(f"s_add_u32 {self.sT0}, {self.sT0}, {self.sXc}")
        k(f"s_lshl_b32 {self.sT0}, {self.sT0}, 4")
        k(f"s_and_b32 {self.sCB}, {self.sY}, 15")
        k(f"s_add_u32 {self.sCB}, {self.sCB}, {self.sT0}")
        for i in order:
            r = getattr(self, names[i])
            k(f"s_mov_b32 {r[2]}, {sizes[i]}")
            k(f"s_mov_b32 {r[3]}, 0x20000")
        k(f"v_lshlrev_b32 {self.vL16}, 4, {self.vL}")
        k(f"v_lshlrev_b32 {self.vTid16}, 4, v0")

    def phase0(self):
        k = self.k
        S, V = self.S, self.V
        sT0, sT1, sT2, sT3 = self.sT0, self.sT1, self.sT2, self.sT3
        vwm = V()
        vc4 = V()
        wc = V(4, 4)
        wn = V(8, 4)
        vc = V()
        self.vTag = V()
        self.vPz = V(4, 4)
        k(f"v_mul_u32_u24 {vwm}, 12288, v0")
        k(f"v_lshlrev_b32 {vc4}, 2, v0")
        for i in range(4):
            k(f"v_mov_b32 {self.vPz[i]}, -1")
        k(f"s_lshl_b32 {sT0}, {self.sCB}, 3")
        k(f"s_add_u32 {sT1}, {sT0}, 6144")
        sXrow = S()
        k(f"s_and_b32 {sT2}, {self.sG}, 7")
        k(f"s_lshl_b32 {sT2}, {sT2}, 8")
        k(f"s_lshr_b32 {sT3}, {self.sG}, 3")
        k(f"s_add_u32 {sT2}, {sT2}, {sT3}")
        k(f"s_lshl_b32 {sT3}, {self.sW}, 6")
        k(f"s_add_u32 {sT2}, {sT2}, {sT3}")
        k(f"s_lshl_b32 {sXrow}, {sT2}, 10")
        self.sXS = S()
        k(f"s_mul_i32 {self.sXS}, {self.sW}, 2304")
        k(f"s_add_u32 {self.sXS}, {self.sXS}, {L_XS}")
        k(f"s_mov_b32 m0, {self.sXS}")
        k("s_waitcnt lgkmcnt(0)")
        k(f"buffer_load_dwordx2 {wc[0:2]}, {vwm}, {self.sWM}, {sT0} offen")
        k(f"buffer_load_dwordx2 {wc[2:4]}, {vwm}, {self.sWM}, {sT1} offen")
        k(f"buffer_load_dword {vc}, {vc4}, {self.sC}, 0 offen")
        k(f"buffer_load_dwordx4 {self.vL16}, {self.sX}, {sXrow} offen lds")
        k(f"s_add_u32 {sT2}, {self.sXS}, 1152")
        k(f"s_mov_b32 m0, {sT2}")
        k(f"s_add_u32 {sXrow}, {sXrow}, 32768")
        k(f"buffer_load_dwordx4 {self.vL16}, {self.sX}, {sXrow} offen lds")
        self.fs(sXrow)
        self.sZ1 = S()
        self.sY2 = S()
        k(f"s_lshl_b32 {sT2}, {self.sG}, 13")
        k(f"s_add_u32 {self.sZ1}, {sT2}, {Z1}")
        k(f"s_add_u32 {self.sY2}, {sT2}, {Y2}")
        k(f"s_add_u32 {sT3}, {self.sZ1}, 4096")
        k(f"buffer_store_dwordx4 {self.vPz}, {self.vTid16}, {self.sWS}, {self.sZ1} offen sc1")
        k(f"buffer_store_dwordx4 {self.vPz}, {self.vTid16}, {self.sWS}, {sT3} offen sc1")
        k(f"s_or_b32 {sT2}, s2, {self.sW}")
        k(f"s_cmp_lg_u32 {sT2}, 0")
        k("s_cbranch_scc1 L_nononce")
        rt = S(2)
        k(f"s_memrealtime {rt}")
        k("s_waitcnt lgkmcnt(0)")
        k(f"s_or_b32 {sT2}, {rt[0]}, 1")
        k(f"v_mov_b32 {self.vTag}, {sT2}")
        k("s_mov_b64 exec, 1")
        k(f"buffer_store_dword {self.vTag}, off, {self.sDBG}, 0 sc0 sc1")
        k("s_mov_b64 exec, -1")
        k("s_waitcnt vmcnt(0)")
        self.fs(rt)
        k("L_nononce:")
        k(f"buffer_load_dword {self.vTag}, off, {self.sDBG}, 0 sc1")
        k(f"s_lshl_b32 {sT0}, {self.sCB}, 4")
        k(f"s_add_u32 {sT0}, {sT0}, 2048")
        k(f"s_add_u32 {sT1}, {sT0}, 6144")
        k(f"buffer_load_dwordx4 {wn[0:4]}, {vwm}, {self.sWM}, {sT0} offen")
        k(f"buffer_load_dwordx4 {wn[4:8]}, {vwm}, {self.sWM}, {sT1} offen")
        k(f"s_add_u32 {sT3}, {self.sY2}, 4096")
        k(f"buffer_store_dwordx4 {self.vPz}, {self.vTid16}, {self.sWS}, {self.sY2} offen sc1")
        k(f"buffer_store_dwordx4 {self.vPz}, {self.vTid16}, {self.sWS}, {sT3} offen sc1")
        vcp = V()
        k(f"s_lshl_b32 {sT0}, {self.sY}, 8")
        k(f"v_add_u32 {vcp}, {sT0}, v0")
        k(f"v_and_b32 {vcp}, 255, {vcp}")
        k(f"v_lshlrev_b32 {vcp}, 7, {vcp}")
        k(f"v_min_u32 {vcp}, L_exit-L_pc, {vcp}")
        k(f"global_load_dword {vcp}, {vcp}, {self.sPC}")
        wr = V(8, 4)
        wi = V(8, 4)
        vw2 = V()
        sWb = S()
        k(f"v_lshlrev_b32 {vw2}, 1, v0")
        k(f"s_lshr_b32 {sT0}, s2, 2")
        k(f"s_and_b32 {sT1}, s2, 3")
        k(f"s_lshl_b32 {sT1}, {sT1}, 9")
        k(f"s_add_u32 {sWb}, {sT0}, {sT1}")
        k(f"s_mul_i32 {sT0}, {sWb}, 514")
        for e in range(8):
            k(f"buffer_load_ushort {wr[e]}, {vw2}, {self.sWR}, {sT0} offen")
            k(f"buffer_load_ushort {wi[e]}, {vw2}, {self.sWI}, {sT0} offen")
            if e < 7:
                k(f"s_add_u32 {sT0}, {sT0}, {64 * 514}")
        sp = V(4, 4)
        vs1 = V()
        vs2 = V()
        vsp = V()
        k(f"v_and_b32 {vs1}, 1, {self.vL}")
        k(f"v_lshlrev_b32 {vs1}, 8, {vs1}")
        k(f"s_lshl_b32 {sT0}, {self.sW}, 6")
        k(f"s_add_u32 {sT0}, {sT0}, {sWb}")
        k(f"v_add_u32 {vs1}, {sT0}, {vs1}")
        k(f"v_sub_u32 {vs2}, 2048, {vs1}")
        k(f"v_and_b32 {vs2}, 2047, {vs2}")
        k(f"v_lshlrev_b32 {vsp}, 8, {self.vL}")
        k(f"v_and_b32 {vsp}, 512, {vsp}")
        k(f"s_movk_i32 {sT0}, 514")
        k(f"v_mad_u32_u24 {vs1}, {vs1}, {sT0}, {vsp}")
        k(f"v_mad_u32_u24 {vs2}, {vs2}, {sT0}, {vsp}")
        k("s_mov_b64 exec, 15")
        k(f"buffer_load_ushort {sp[0]}, {vs1}, {self.sWR}, 0 offen")
        k(f"buffer_load_ushort {sp[1]}, {vs1}, {self.sWI}, 0 offen")
        k(f"buffer_load_ushort {sp[2]}, {vs2}, {self.sWR}, 0 offen")
        k(f"buffer_load_ushort {sp[3]}, {vs2}, {self.sWI}, 0 offen")
        k("s_mov_b64 exec, -1")
        sWT_ = S()
        sStg = S()
        k(f"s_lshl_b32 {sWT_}, s2, 2")
        k(f"s_add_u32 {sWT_}, {sWT_}, {self.sW}")
        k(f"s_lshr_b32 {sT0}, {sWT_}, 3")
        k(f"s_lshl_b32 {sT0}, {sT0}, 14")
        k(f"s_and_b32 {sT1}, {sWT_}, 7")
        k(f"s_lshl_b32 {sT1}, {sT1}, 7")
        k(f"s_add_u32 {sT0}, {sT0}, {sT1}")
        k(f"s_add_u32 {sT1}, {sT0}, 8192")
        k(f"v_lshrrev_b32 {vs1}, 3, {self.vL}")
        k(f"v_lshlrev_b32 {vs1}, 10, {vs1}")
        k(f"v_and_b32 {vs2}, 7, {self.vL}")
        k(f"v_lshl_add_u32 {vs1}, {vs2}, 4, {vs1}")
        k(f"s_mul_i32 {sStg}, {self.sW}, 24576")
        k(f"s_mov_b32 m0, {sStg}")
        k(f"s_add_u32 {sT2}, {sStg}, 1024")
        k(f"buffer_load_dwordx4 {vs1}, {self.sW2}, {sT0} offen lds")
        k(f"s_mov_b32 m0, {sT2}")
        k(f"buffer_load_dwordx4 {vs1}, {self.sW2}, {sT1} offen lds")
        self.stamp()

        self.pa_consts()

        acc = V(8, 4)
        t = V(8, 4)
        s0, s1 = V(), V()
        k("s_waitcnt vmcnt(32)")
        self.stamp()
        k(f"v_lshlrev_b32 {t[0]}, 16, {vc}")
        k(f"v_and_b32 {t[1]}, 0xffff0000, {vc}")
        k(f"v_mul_f32 {t[2]}, {f2h(-LOG2E)}, {t[0]}")
        k(f"v_mul_f32 {t[3]}, {f2h(-LOG2E)}, {t[1]}")
        k(f"v_exp_f32 {t[2]}, {t[2]}")
        k(f"v_exp_f32 {t[3]}, {t[3]}")
        k(f"v_lshlrev_b32 {acc[0]}, 16, {wc[0]}")
        k(f"v_add_f32 {t[2]}, 1.0, {t[2]}")
        k(f"v_add_f32 {t[3]}, 1.0, {t[3]}")
        k(f"v_rcp_f32 {t[2]}, {t[2]}")
        k(f"v_rcp_f32 {t[3]}, {t[3]}")
        k(f"v_and_b32 {acc[1]}, 0xffff0000, {wc[0]}")
        k(f"v_mul_f32 {t[0]}, {t[0]}, {t[2]}")
        k(f"v_mul_f32 {t[1]}, {t[1]}, {t[3]}")
        k(f"v_cvt_pk_bf16_f32 {t[0]}, {t[0]}, {t[1]}")
        k(f"v_lshlrev_b32 {acc[2]}, 16, {wc[1]}")
        k(f"v_and_b32 {acc[3]}, 0xffff0000, {wc[1]}")
        k(f"v_lshlrev_b32 {s0}, 16, {t[0]}")
        k(f"v_and_b32 {s1}, 0xffff0000, {t[0]}")
        k(f"v_lshlrev_b32 {t[4]}, 16, {wc[2]}")
        k(f"v_and_b32 {t[5]}, 0xffff0000, {wc[2]}")
        k(f"v_lshlrev_b32 {t[6]}, 16, {wc[3]}")
        k(f"v_and_b32 {t[7]}, 0xffff0000, {wc[3]}")
        for i in range(4):
            k(f"v_mul_f32 {acc[i]}, {s0}, {acc[i]}")
        for i in range(4):
            k(f"v_fmac_f32 {acc[i]}, {s1}, {t[4 + i]}")
        self.wave_sum63([acc[i] for i in range(4)])
        vred = V()
        k(f"s_lshl_b32 {sT0}, {self.sW}, 4")
        k(f"s_add_u32 {sT0}, {sT0}, {L_RED}")
        k(f"v_mov_b32 {vred}, {sT0}")
        k("s_mov_b32 exec_lo, 0")
        k("s_mov_b32 exec_hi, 0x80000000")
        k(f"ds_write_b128 {vred}, {acc[0:4]}")
        k("s_mov_b64 exec, -1")
        k("s_waitcnt vmcnt(27)")
        k(f"s_mov_b32 {self.sSpin}, 0")
        k("L_tag:")
        k(f"v_cmp_ne_u32 vcc, 0, {self.vTag}")
        k("s_cbranch_vccnz L_tagok")
        k(f"buffer_load_dword {self.vTag}, off, {self.sDBG}, 0 sc1")
        k("s_waitcnt vmcnt(0)")
        k(f"s_add_u32 {self.sSpin}, {self.sSpin}, 1")
        k(f"s_cmp_lt_u32 {self.sSpin}, {SPIN_MAX}")
        k("s_cbranch_scc1 L_tag")
        self.timeout_block(1)
        k("L_tagok:")
        k("s_waitcnt lgkmcnt(0)")
        k("s_barrier")
        k(f"s_cmp_lg_u32 {self.sW}, 0")
        k("s_cbranch_scc1 L_nopub")
        p = V(16, 4)
        k(f"v_mov_b32 {vred}, {L_RED}")
        for i in range(4):
            k(f"ds_read_b128 {p[4 * i:4 * i + 4]}, {vred} offset:{16 * i}")
        k(f"s_cmp_ge_u32 {self.sCB}, 128")
        k(f"s_cselect_b32 {sT0}, 1.0, 0")
        k(f"s_lshl_b32 {sT1}, {self.sCB}, 4")
        k("s_waitcnt lgkmcnt(0)")
        k(f"v_pk_add_f32 {p[0:2]}, {p[0:2]}, {p[4:6]}")
        k(f"v_pk_add_f32 {p[2:4]}, {p[2:4]}, {p[6:8]}")
        k(f"v_pk_add_f32 {p[8:10]}, {p[8:10]}, {p[12:14]}")
        k(f"v_pk_add_f32 {p[10:12]}, {p[10:12]}, {p[14:16]}")
        k(f"v_pk_add_f32 {p[0:2]}, {p[0:2]}, {p[8:10]}")
        k(f"v_pk_add_f32 {p[2:4]}, {p[2:4]}, {p[10:12]}")
        k(f"v_cvt_pk_bf16_f32 {p[4]}, {p[0]}, {p[1]}")
        k(f"v_cvt_pk_bf16_f32 {p[5]}, {p[2]}, {p[3]}")
        k(f"v_lshlrev_b32 {p[0]}, 16, {p[4]}")
        k(f"v_and_b32 {p[1]}, 0xffff0000, {p[4]}")
        k(f"v_lshlrev_b32 {p[2]}, 16, {p[5]}")
        k(f"v_and_b32 {p[3]}, 0xffff0000, {p[5]}")
        for i in range(4):
            k(f"v_add_f32 {p[i]}, {sT0}, {p[i]}")
        k(f"v_cvt_pk_bf16_f32 {p[4]}, {p[0]}, {p[1]}")
        k(f"v_cvt_pk_bf16_f32 {p[5]}, {p[2]}, {p[3]}")
        k(f"v_mov_b32 {p[6]}, {self.vTag}")
        k(f"v_mov_b32 {p[7]}, {self.vTag}")
        k("s_mov_b64 exec, 1")
        k(f"buffer_store_dwordx4 {p[4:8]}, off, {self.sWS}, {sT1} offset:{MODG} sc1")
        k("s_mov_b64 exec, -1")
        k("L_nopub:")
        self.stamp()

        k("s_waitcnt vmcnt(25)")
        u = V(8, 4)
        for i in range(4):
            k(f"v_lshlrev_b32 {acc[2 * i]}, 16, {wn[i]}")
            k(f"v_and_b32 {acc[2 * i + 1]}, 0xffff0000, {wn[i]}")
            k(f"v_lshlrev_b32 {u[2 * i]}, 16, {wn[4 + i]}")
            k(f"v_and_b32 {u[2 * i + 1]}, 0xffff0000, {wn[4 + i]}")
        for i in range(8):
            k(f"v_mul_f32 {acc[i]}, {s0}, {acc[i]}")
        for i in range(8):
            k(f"v_fmac_f32 {acc[i]}, {s1}, {u[i]}")
        self.wave_sum63([acc[i] for i in range(8)])
        k(f"s_lshl_b32 {sT0}, {self.sW}, 5")
        k(f"s_add_u32 {sT0}, {sT0}, {L_RED + 64}")
        k(f"v_mov_b32 {vred}, {sT0}")
        k("s_mov_b32 exec_lo, 0")
        k("s_mov_b32 exec_hi, 0x80000000")
        k(f"ds_write_b128 {vred}, {acc[0:4]}")
        k(f"ds_write_b128 {vred}, {acc[4:8]} offset:16")
        k("s_mov_b64 exec, -1")

        xa = V(8, 4)
        self.vN = V(16, 4)
        n = self.vN
        vtr = V()
        k(f"v_and_b32 {vtr}, 15, {self.vL}")
        k(f"v_lshlrev_b32 {vtr}, 3, {vtr}")
        k(f"v_bfe_u32 {t[0]}, {self.vL}, 4, 1")
        k(f"v_mul_u32_u24 {t[0]}, 1152, {t[0]}")
        k(f"v_lshrrev_b32 {t[1]}, 5, {self.vL}")
        k(f"v_lshlrev_b32 {t[1]}, 8, {t[1]}")
        k(f"v_add3_u32 {vtr}, {vtr}, {t[0]}, {t[1]}")
        k(f"v_add_u32 {vtr}, {self.sXS}, {vtr}")
        for ks in range(2):
            for e in range(2):
                k(f"ds_read_b64_tr_b16 {xa[4 * ks + 2 * e:4 * ks + 2 * e + 2]}, {vtr} offset:{(16 * ks + 4 * e) * 32}")
        k("s_waitcnt lgkmcnt(0)")
        k("s_barrier")
        for i in range(8):
            k(f"v_lshlrev_b32 {n[2 * i]}, 16, {xa[i]}")
            k(f"v_and_b32 {n[2 * i + 1]}, 0xffff0000, {xa[i]}")
        k(f"s_cmp_lg_u32 {self.sW}, 1")
        k("s_cbranch_scc1 L_nomodn")
        k(f"v_and_b32 {t[4]}, 7, {self.vL}")
        k(f"v_lshlrev_b32 {t[4]}, 2, {t[4]}")
        k(f"v_add_u32 {t[5]}, {L_RED + 64}, {t[4]}")
        for i in range(4):
            k(f"ds_read_b32 {t[i]}, {t[5]} offset:{32 * i}")
        k(f"s_lshr_b32 {sT0}, {self.sCB}, 6")
        k(f"s_cmp_eq_u32 {sT0}, 2")
        k(f"s_cselect_b32 {sT0}, 1.0, 0")
        k(f"s_lshl_b32 {sT1}, {self.sCB}, 5")
        k(f"s_add_u32 {sT1}, {sT1}, {MODN}")
        k("s_waitcnt lgkmcnt(0)")
        k(f"v_add_f32 {t[0]}, {t[0]}, {t[1]}")
        k(f"v_add_f32 {t[2]}, {t[2]}, {t[3]}")
        k(f"v_add_f32 {t[0]}, {t[0]}, {t[2]}")
        k(f"v_cvt_pk_bf16_f32 {t[0]}, {t[0]}, {t[0]}")
        k(f"v_and_b32 {t[0]}, 0xffff0000, {t[0]}")
        k(f"v_add_f32 {t[0]}, {sT0}, {t[0]}")
        k(f"v_cvt_pk_bf16_f32 {t[0]}, {t[0]}, {t[0]}")
        k(f"v_and_b32 {t[0]}, 0xffff0000, {t[0]}")
        k("s_mov_b64 exec, 0xff")
        k(f"buffer_store_dword {t[0]}, {t[4]}, {self.sWS}, {sT1} offen sc1")
        k("s_mov_b64 exec, -1")
        k("L_nomodn:")
        self.ln_norm_pa(n, t)

        k("s_waitcnt vmcnt(2)")
        for e in range(8):
            k(f"v_lshl_or_b32 {wr[e]}, {wi[e]}, 16, {wr[e]}")
        k(f"v_cmp_eq_u32 vcc, 0, v0")
        k(f"v_mov_b32 {t[1]}, {OOB}")
        k(f"v_cndmask_b32 {t[0]}, {self.vTid16}, {t[1]}, vcc")
        k(f"s_mul_i32 {sT0}, s2, {2 * 257 * 16}")
        k(f"s_add_u32 {sT0}, {sT0}, {WT}")
        k(f"s_add_u32 {sT1}, {sT0}, {257 * 16}")
        k(f"buffer_store_dwordx4 {wr[0:4]}, {t[0]}, {self.sWS}, {sT0} offen sc1")
        k(f"buffer_store_dwordx4 {wr[4:8]}, {t[0]}, {self.sWS}, {sT1} offen sc1")
        for i in range(4):
            k(f"v_lshlrev_b32 {sp[i]}, 16, {sp[i]}")
        k(f"v_add_f32 {t[2]}, {sp[0]}, {sp[2]}")
        k(f"v_sub_f32 {t[3]}, {sp[1]}, {sp[3]}")
        k(f"v_mul_f32 {t[2]}, 0x3e800000, {t[2]}")
        k(f"v_mul_f32 {t[3]}, 0x3e800000, {t[3]}")
        k(f"v_cvt_pk_bf16_f32 {t[4]}, {t[2]}, {t[3]}")
        k(f"v_cvt_pk_bf16_f32 {t[5]}, -{t[3]}, {t[2]}")
        k(f"v_cmp_lt_u32 vcc, 1, {self.vL}")
        k(f"v_cndmask_b32 {t[4]}, {t[4]}, {t[5]}, vcc")
        k(f"v_and_b32 {t[2]}, 1, {self.vL}")
        k(f"v_mul_u32_u24 {t[2]}, 4112, {t[2]}")
        k(f"v_lshl_add_u32 {t[2]}, {vsp}, 3, {t[2]}")
        k(f"s_lshl_b32 {sT1}, {self.sW}, 2")
        k(f"s_add_u32 {sT0}, {sT0}, {sT1}")
        k("s_mov_b64 exec, 15")
        k(f"buffer_store_dword {t[4]}, {t[2]}, {self.sWS}, {sT0} offen sc1")
        k("s_mov_b64 exec, -1")

        self.vTrB = V()
        k(f"v_bfe_u32 {t[2]}, {self.vL}, 2, 2")
        k(f"v_lshrrev_b32 {t[3]}, 5, {self.vL}")
        k(f"v_lshl_add_u32 {t[2]}, {t[3]}, 2, {t[2]}")
        k(f"v_and_b32 {t[3]}, 3, {self.vL}")
        k(f"v_lshlrev_b32 {t[3]}, 3, {t[3]}")
        k(f"v_and_b32 {t[4]}, 16, {self.vL}")
        k(f"v_lshl_add_u32 {t[3]}, {t[4]}, 1, {t[3]}")
        k(f"v_mul_u32_u24 {self.vTrB}, 192, {t[2]}")
        k(f"v_add_u32 {self.vTrB}, {self.vTrB}, {t[3]}")
        k(f"v_lshl_add_u32 {t[2]}, {t[2]}, 7, {t[3]}")
        k(f"v_add_u32 {t[2]}, {sStg}, {t[2]}")
        k("s_waitcnt vmcnt(3)")
        for e in range(2):
            k(f"ds_read_b64_tr_b16 {u[4 * e:4 * e + 2]}, {t[2]} offset:{64 * e}")
            k(f"ds_read_b64_tr_b16 {u[4 * e + 2:4 * e + 4]}, {t[2]} offset:{64 * e + 1024}")
        k(f"s_lshl_b32 {sT0}, {sWT_}, 11")
        k(f"s_add_u32 {sT0}, {sT0}, {W2F}")
        k(f"s_cmp_lt_u32 {sWT_}, 688")
        k(f"s_cselect_b32 {sT0}, {sT0}, {OOB}")
        k("s_waitcnt lgkmcnt(0)")
        k(f"buffer_store_dwordx4 {u[0:4]}, {self.vL16}, {self.sWS}, {sT0} offen sc1")
        k(f"buffer_store_dwordx4 {u[4:8]}, {self.vL16}, {self.sWS}, {sT0} offen offset:1024 sc1")

        self.later_addrs(t)
        k(f"buffer_store_dwordx4 {self.vPz}, {self.vH2o}, {self.sWS}, {self.sH2o} offen sc1")
        k(f"s_add_u32 {sT0}, {self.sH2o}, 4096")
        k(f"buffer_store_dwordx4 {self.vPz}, {self.vH2o}, {self.sWS}, {sT0} offen sc1")
        k(f"buffer_store_dwordx4 {self.vPz}, {self.vL16}, {self.sWS}, {self.sX1o} offen sc1")
        k(f"buffer_store_dwordx4 {self.vPz}, {self.vL16}, {self.sWS}, {self.sX1o} offen offset:1024 sc1")
        for i in range(4):
            k(f"buffer_store_dwordx4 {self.vPz}, {self.vL16}, {self.sWS}, {self.sH1o} offen offset:{1024 * i} sc1")
        for i in range(2):
            k(f"buffer_store_dwordx4 {self.vPz}, {self.vL16}, {self.sWS}, {self.sH1o2} offen offset:{1024 * i} sc1")
        self.stamp()

        self.fv(vwm, vc4, wc, wn, vc, vcp, wr, wi, vw2, sp, vs1, vs2, vsp, acc, s0, s1, vred, p, u, xa, vtr)
        self.fv(t)
        self.fs(sWb, sWT_, sStg, self.sC, self.sWM, self.sWR, self.sWI, self.sW2, self.sX, self.sPC, self.sCB)

    def later_addrs(self, t):
        k = self.k
        S, V = self.S, self.V
        sT0, sT1 = self.sT0, self.sT1
        self.vH2o, self.sH2o, self.sX1o, self.sH1o, self.sH1o2 = V(), S(), S(), S(), S()
        self.sFB, self.sR = S(), S()
        k(f"v_lshrrev_b32 {t[0]}, 3, {self.vL}")
        k(f"v_lshlrev_b32 {t[0]}, 9, {t[0]}")
        k(f"v_and_b32 {t[1]}, 7, {self.vL}")
        k(f"v_lshl_add_u32 {self.vH2o}, {t[1]}, 4, {t[0]}")
        k(f"s_lshr_b32 {sT0}, {self.sG}, 2")
        k(f"s_lshl_b32 {sT0}, {sT0}, 15")
        k(f"s_and_b32 {sT1}, {self.sG}, 3")
        k(f"s_lshl_b32 {sT1}, {sT1}, 7")
        k(f"s_add_u32 {sT0}, {sT0}, {sT1}")
        k(f"s_lshl_b32 {sT1}, {self.sW}, 13")
        k(f"s_add_u32 {sT0}, {sT0}, {sT1}")
        k(f"s_add_u32 {self.sH2o}, {sT0}, {H2}")
        k(f"s_lshl_b32 {sT0}, {self.sG}, 13")
        k(f"s_lshl_b32 {sT1}, {self.sW}, 11")
        k(f"s_add_u32 {sT0}, {sT0}, {sT1}")
        k(f"s_add_u32 {self.sX1o}, {sT0}, {X1}")
        k(f"s_lshr_b32 {sT0}, {self.sY}, 4")
        k(f"s_lshl_b32 {self.sR}, {self.sXc}, 1")
        k(f"s_add_u32 {self.sR}, {self.sR}, {sT0}")
        k(f"s_and_b32 {sT0}, {self.sY}, 15")
        k(f"s_mul_i32 {sT1}, {sT0}, 3")
        k(f"s_lshl_b32 {self.sFB}, {sT0}, 1")
        k(f"s_add_u32 {self.sFB}, {self.sFB}, 11")
        k(f"s_min_u32 {self.sFB}, {self.sFB}, {sT1}")
        k(f"s_lshl_b32 {sT1}, {self.sR}, 2")
        k(f"s_add_u32 {sT1}, {sT1}, {self.sW}")
        k(f"s_mul_i32 {sT1}, {sT1}, 43")
        k(f"s_add_u32 {sT1}, {sT1}, {self.sFB}")
        k(f"s_lshl_b32 {sT1}, {sT1}, 11")
        k(f"s_add_u32 {self.sH1o}, {sT1}, {H1}")
        k(f"s_add_u32 {sT1}, {self.sH1o}, 4096")
        k(f"s_cmp_lt_u32 {sT0}, 11")
        k(f"s_cselect_b32 {self.sH1o2}, {sT1}, {OOB}")

    def ln_norm_pa(self, n, t):
        k = self.k
        k(f"v_pk_add_f32 {t[0:2]}, {n[0:2]}, {n[2:4]}")
        k(f"v_pk_add_f32 {t[2:4]}, {n[4:6]}, {n[6:8]}")
        k(f"v_pk_add_f32 {t[4:6]}, {n[8:10]}, {n[10:12]}")
        k(f"v_pk_add_f32 {t[6:8]}, {n[12:14]}, {n[14:16]}")
        k(f"v_pk_add_f32 {t[0:2]}, {t[0:2]}, {t[2:4]}")
        k(f"v_pk_add_f32 {t[4:6]}, {t[4:6]}, {t[6:8]}")
        k(f"v_pk_add_f32 {t[0:2]}, {t[0:2]}, {t[4:6]}")
        k(f"v_add_f32 {t[0]}, {t[0]}, {t[1]}")
        self.row_allsum([t[0]])
        k(f"v_mov_b32 {t[1]}, {t[0]}")
        k(f"v_permlane32_swap_b32 {t[0]}, {t[1]}")
        k(f"v_add_f32 {t[0]}, {t[0]}, {t[1]}")
        k(f"v_mul_f32 {t[0]}, {f2h(-1.0 / 512)}, {t[0]}")
        for i in range(8):
            k(f"v_pk_add_f32 {n[2 * i:2 * i + 2]}, {n[2 * i:2 * i + 2]}, {t[0:2]} op_sel_hi:[1,0]")
        k(f"v_pk_mul_f32 {t[2:4]}, {n[0:2]}, {n[0:2]}")
        k(f"v_pk_mul_f32 {t[4:6]}, {n[2:4]}, {n[2:4]}")
        for i in range(2, 8, 2):
            k(f"v_pk_fma_f32 {t[2:4]}, {n[2 * i:2 * i + 2]}, {n[2 * i:2 * i + 2]}, {t[2:4]}")
            k(f"v_pk_fma_f32 {t[4:6]}, {n[2 * i + 2:2 * i + 4]}, {n[2 * i + 2:2 * i + 4]}, {t[4:6]}")
        k(f"v_pk_add_f32 {t[2:4]}, {t[2:4]}, {t[4:6]}")
        k(f"v_add_f32 {t[0]}, {t[2]}, {t[3]}")
        self.row_allsum([t[0]])
        k(f"v_mov_b32 {t[1]}, {t[0]}")
        k(f"v_permlane32_swap_b32 {t[0]}, {t[1]}")
        k(f"v_add_f32 {t[0]}, {t[0]}, {t[1]}")
        k(f"v_mov_b32 {t[1]}, {f2h(1e-5)}")
        k(f"v_fmac_f32 {t[1]}, {f2h(1.0 / 512)}, {t[0]}")
        k(f"v_rsq_f32 {t[0]}, {t[1]}")
        for i in range(8):
            k(f"v_pk_mul_f32 {n[2 * i:2 * i + 2]}, {n[2 * i:2 * i + 2]}, {t[0:2]} op_sel_hi:[1,0]")

    def pa_consts(self):
        k = self.k
        V = self.V
        self.B1c, self.B1s = V(8, 4), V(8, 4)
        self.TAc, self.TAs = V(8, 4), V(8, 4)
        self.A2 = V(8, 4)
        kf, hf, base, sg = V(), V(), V(), V()
        a = V(8, 4)
        c = V(8, 4)
        k(f"v_and_b32 {kf}, 31, {self.vL}")
        k(f"v_lshlrev_b32 {sg}, 31, {self.vL}")
        k(f"v_cvt_f32_u32 {kf}, {kf}")
        k(f"v_lshrrev_b32 {hf}, 5, {self.vL}")
        k(f"v_cvt_f32_u32 {hf}, {hf}")
        k(f"v_lshrrev_b32 {base}, 16, {sg}")
        k(f"v_or_b32 {sg}, {sg}, {base}")
        k(f"v_mul_f32 {kf}, {f2h(1.0 / 32)}, {kf}")
        k(f"v_mul_f32 {base}, {hf}, {kf}")
        k(f"v_mul_f32 {base}, 0x41000000, {base}")
        for j in range(8):
            self.ang(a[j], kf, j, base)
        for j in range(8):
            k(f"v_cos_f32 {c[j]}, {a[j]}")
            k(f"v_sin_f32 {a[j]}, {a[j]}")
        for j in range(4):
            k(f"v_cvt_pk_bf16_f32 {self.B1c[j]}, {c[2 * j]}, {c[2 * j + 1]}")
            k(f"v_cvt_pk_bf16_f32 {self.B1s[j]}, -{a[2 * j]}, -{a[2 * j + 1]}")
        for j in range(4):
            k(f"v_xor_b32 {self.B1c[4 + j]}, {sg}, {self.B1c[j]}")
            k(f"v_xor_b32 {self.B1s[4 + j]}, {sg}, {self.B1s[j]}")
        k(f"v_mul_f32 {kf}, {f2h(1.0 / 16)}, {kf}")
        k(f"v_mul_f32 {base}, {f2h(1.0 / 32)}, {base}")
        for r in range(8):
            self.ang(a[r], kf, 8 * (r // 4) + r % 4, base)
        for r in range(8):
            k(f"v_cos_f32 {self.TAc[r]}, {a[r]}")
            k(f"v_sin_f32 {self.TAs[r]}, {a[r]}")
        k(f"v_bfe_u32 {kf}, {self.vL}, 1, 4")
        k(f"v_lshlrev_b32 {sg}, 31, {kf}")
        k(f"v_cvt_f32_u32 {kf}, {kf}")
        k(f"v_lshrrev_b32 {base}, 16, {sg}")
        k(f"v_or_b32 {sg}, {sg}, {base}")
        k(f"v_mul_f32 {kf}, {f2h(1.0 / 16)}, {kf}")
        k(f"v_and_b32 {base}, 1, {self.vL}")
        k(f"v_cvt_f32_u32 {base}, {base}")
        k(f"v_mul_f32 {base}, 0x3e800000, {base}")
        k(f"v_mul_f32 {hf}, 4.0, {hf}")
        k(f"v_fmac_f32 {base}, {hf}, {kf}")
        for b in range(4):
            self.ang(a[b], kf, b, base)
        for b in range(4):
            k(f"v_cos_f32 {c[b]}, {a[b]}")
            k(f"v_sin_f32 {a[b]}, {a[b]}")
        k(f"v_cvt_pk_bf16_f32 {self.A2[0]}, {c[0]}, {c[1]}")
        k(f"v_cvt_pk_bf16_f32 {self.A2[1]}, {c[2]}, {c[3]}")
        k(f"v_cvt_pk_bf16_f32 {self.A2[2]}, {a[0]}, {a[1]}")
        k(f"v_cvt_pk_bf16_f32 {self.A2[3]}, {a[2]}, {a[3]}")
        for j in range(4):
            k(f"v_xor_b32 {self.A2[4 + j]}, {sg}, {self.A2[j]}")
        self.fv(kf, hf, base, sg, a, c)

    def poll2(self, name, d, va0, so0, va1, so1, code):
        k = self.k
        k(f"s_mov_b32 {self.sSpin}, 0")
        k(f"L_{name}_poll:")
        k(f"buffer_load_dwordx4 {d[0:4]}, {va0}, {self.sWS}, {so0} offen sc1")
        k(f"buffer_load_dwordx4 {d[4:8]}, {va1}, {self.sWS}, {so1} offen sc1")
        k("s_waitcnt vmcnt(0)")
        k(f"v_max_u32 {self.vT0}, {d[0]}, {d[4]}")
        k(f"v_cmp_eq_u32 vcc, -1, {self.vT0}")
        k("s_and_b64 exec, exec, vcc")
        k(f"s_cbranch_execz L_{name}_ok")
        k(f"s_add_u32 {self.sSpin}, {self.sSpin}, 1")
        k(f"s_cmp_lt_u32 {self.sSpin}, {SPIN_MAX}")
        k(f"s_cbranch_scc1 L_{name}_poll")
        self.timeout_block(code)
        k(f"L_{name}_ok:")
        k("s_mov_b64 exec, -1")

    def phaseA(self):
        k = self.k
        S, V = self.S, self.V
        sT0, sT1, sT2 = self.sT0, self.sT1, self.sT2
        g = V(4, 4)
        t = V(8, 4)
        vmw, vmr, vtw, vtr = V(), V(), V(), V()
        k(f"v_lshrrev_b32 {t[0]}, 7, v0")
        k(f"v_mul_u32_u24 {t[0]}, 2304, {t[0]}")
        k(f"v_and_b32 {t[1]}, 3, v0")
        k(f"v_mul_u32_u24 {t[1]}, 576, {t[1]}")
        k(f"v_and_b32 {t[2]}, 124, v0")
        k(f"v_add3_u32 {vmw}, {t[0]}, {t[1]}, {t[2]}")
        k(f"v_and_b32 {t[0]}, 15, {self.vL}")
        k(f"v_mul_u32_u24 {t[0]}, 144, {t[0]}")
        k(f"v_and_b32 {t[1]}, 32, {self.vL}")
        k(f"v_add_u32 {vmr}, {t[0]}, {t[1]}")
        k(f"v_and_b32 {t[0]}, 31, {self.vL}")
        k(f"v_lshl_add_u32 {t[0]}, {t[1]}, 3, {t[0]}")
        k(f"s_lshl_b32 {sT0}, {self.sW}, 5")
        k(f"v_add_lshl_u32 {vtw}, {t[0]}, {sT0}, 2")
        k(f"v_and_b32 {t[0]}, 1, {self.vL}")
        k(f"v_mul_u32_u24 {t[0]}, 1040, {t[0]}")
        k(f"v_lshrrev_b32 {t[1]}, 1, {self.vL}")
        k(f"s_lshl_b32 {sT0}, {self.sW}, 8")
        k(f"v_add3_u32 {t[0]}, {t[0]}, {t[1]}, {sT0}")
        k(f"v_lshlrev_b32 {vtr}, 2, {t[0]}")
        k(f"v_add_u32 {vtr}, {L_R2}, {vtr}")
        vw1 = V(3)
        for m in range(3):
            k(f"v_add_u32 {t[0]}, {64 * m}, {self.vL}")
            k(f"v_mul_u32_u24 {t[1]}, 683, {t[0]}")
            k(f"v_lshrrev_b32 {t[1]}, 13, {t[1]}")
            k(f"v_mul_u32_u24 {t[2]}, 12, {t[1]}")
            k(f"v_sub_u32 {t[0]}, {t[0]}, {t[2]}")
            k(f"v_mul_u32_u24 {t[1]}, 2752, {t[1]}")
            k(f"v_lshl_add_u32 {vw1[m]}, {t[0]}, 4, {t[1]}")
        k(f"s_mov_b32 {self.sSpin}, 0")
        k("L_mod_poll:")
        k(f"buffer_load_dwordx4 {g}, {self.vTid16}, {self.sWS}, 0 offen offset:{MODG} sc1")
        k("s_waitcnt vmcnt(0)")
        k(f"v_cmp_ne_u32 vcc, {g[2]}, {self.vTag}")
        k("s_and_b64 exec, exec, vcc")
        k("s_cbranch_execz L_mod_ok")
        k(f"s_add_u32 {self.sSpin}, {self.sSpin}, 1")
        k(f"s_cmp_lt_u32 {self.sSpin}, {SPIN_MAX}")
        k("s_cbranch_scc1 L_mod_poll")
        self.timeout_block(2)
        k("L_mod_ok:")
        k("s_mov_b64 exec, -1")
        self.stamp()
        k(f"v_lshlrev_b32 {t[0]}, 16, {g[0]}")
        k(f"v_and_b32 {t[1]}, 0xffff0000, {g[0]}")
        k(f"v_lshlrev_b32 {t[2]}, 16, {g[1]}")
        k(f"v_and_b32 {t[3]}, 0xffff0000, {g[1]}")
        for i in range(4):
            k(f"ds_write_b32 {vmw}, {t[i]} offset:{144 * i + self.R1off(vmw)}")
        k("s_waitcnt lgkmcnt(0)")
        k("s_barrier")
        sa, c1 = V(16, 4), V(16, 4)
        for v, dst in ((1, c1), (0, sa)):
            for q in range(4):
                off = v * 2304 + (16 * (q // 2) + 4 * (q % 2)) * 4
                k(f"ds_read_b128 {dst[4 * q:4 * q + 4]}, {vmr} offset:{off + self.R1off(vmr)}")
        k(f"s_mul_i32 {sT0}, {self.sW}, {128 * 2752}")
        k(f"s_lshl_b32 {sT1}, {self.sFB}, 6")
        k(f"s_add_u32 {sT0}, {sT0}, {sT1}")
        k(f"s_mul_i32 {sT1}, {self.sW}, 24576")
        for gi in range(8):
            for m in range(3):
                k(f"s_mov_b32 m0, {sT1}")
                k(f"s_add_u32 {sT1}, {sT1}, 1024")
                k(f"buffer_load_dwordx4 {vw1[m]}, {self.sW1}, {sT0} offen lds")
            if gi < 7:
                k(f"s_add_u32 {sT0}, {sT0}, {16 * 2752}")
        n = self.vN
        A = V(8, 4)
        k("s_waitcnt lgkmcnt(0)")
        for i in range(8):
            k(f"v_pk_fma_f32 {n[2 * i:2 * i + 2]}, {n[2 * i:2 * i + 2]}, {c1[2 * i:2 * i + 2]}, {sa[2 * i:2 * i + 2]}")
        for i in range(8):
            k(f"v_cvt_pk_bf16_f32 {A[i]}, {n[2 * i]}, {n[2 * i + 1]}")
        Sr, Si = c1, sa
        k(f"v_mfma_f32_32x32x16_bf16 {Sr}, {A[0:4]}, {self.B1c[0:4]}, 0")
        k(f"v_mfma_f32_32x32x16_bf16 {Si}, {A[0:4]}, {self.B1s[0:4]}, 0")
        k(f"v_mfma_f32_32x32x16_bf16 {Sr}, {A[4:8]}, {self.B1c[4:8]}, {Sr}")
        k(f"v_mfma_f32_32x32x16_bf16 {Si}, {A[4:8]}, {self.B1s[4:8]}, {Si}")
        D = [n, V(16, 4)]
        Bq = V(16, 4)
        for row in range(2):
            for tt in range(2):
                for hb in range(2):
                    r = 8 * row + 4 * tt + 2 * hb
                    w = 4 * tt + 2 * hb
                    self.cmul_pk(None, Si[r:r + 2], Sr[r:r + 2], Si[r:r + 2], self.TAc[w:w + 2], self.TAs[w:w + 2],
                                 True, t[4 * hb:4 * hb + 4])
                    k(f"v_cvt_pk_bf16_f32 {Bq[8 * row + 4 * tt + hb]}, {t[4 * hb]}, {t[4 * hb + 1]}")
                    k(f"v_cvt_pk_bf16_f32 {Bq[8 * row + 4 * tt + 2 + hb]}, {Si[r]}, {Si[r + 1]}")
        for row in range(2):
            k(f"v_mfma_f32_32x32x16_bf16 {D[row]}, {self.A2[0:4]}, {Bq[8 * row:8 * row + 4]}, 0")
        for row in range(2):
            k(f"v_mfma_f32_32x32x16_bf16 {D[row]}, {self.A2[4:8]}, {Bq[8 * row + 4:8 * row + 8]}, {D[row]}")
        k(f"v_cmp_eq_u32 vcc, 0, {self.vL}")
        for row in range(2):
            k(f"v_cndmask_b32 {D[row][1]}, {D[row][1]}, {D[row][8]}, vcc")
        for r in range(8):
            k(f"v_cvt_pk_bf16_f32 {t[r]}, {D[0][r]}, {D[1][r]}")
        for r in range(8):
            a_, b_ = r // 4, r % 4
            off = ((b_ % 2) * 1040 + (4 * a_ + b_ // 2) * 128) * 4
            k(f"ds_write_b32 {vtw}, {t[r]} offset:{off + self.R2off(vtw)}")
        k("s_waitcnt lgkmcnt(0)")
        k("s_barrier")
        for i in range(2):
            k(f"ds_read2_b32 {t[4 * i:4 * i + 2]}, {vtr} offset0:{128 * i} offset1:{128 * i + 32}")
            k(f"ds_read2_b32 {t[4 * i + 2:4 * i + 4]}, {vtr} offset0:{128 * i + 64} offset1:{128 * i + 96}")
        k(f"s_lshl_b32 {sT0}, {self.sW}, 11")
        k(f"s_add_u32 {sT0}, {sT0}, {self.sZ1}")
        k("s_waitcnt lgkmcnt(2)")
        k(f"v_min_u32 {t[0]}, -2, {t[0]}")
        k(f"buffer_store_dwordx4 {t[0:4]}, {self.vL16}, {self.sWS}, {sT0} offen sc1")
        k("s_waitcnt lgkmcnt(0)")
        k(f"v_min_u32 {t[4]}, -2, {t[4]}")
        k(f"buffer_store_dwordx4 {t[4:8]}, {self.vL16}, {self.sWS}, {sT0} offen offset:1024 sc1")
        self.stamp()
        self.fv(g, vmw, vmr, vtw, vtr, vw1, sa, c1, A, D[1], Bq, n)
        self.fv(self.B1c, self.B1s, self.TAc, self.TAs, self.A2)
        self.fs(self.sW1, self.sZ1)
        self.tPend = t

    def R1off(self, v):
        return self._addbase(v, L_R1)

    def R2off(self, v):
        return self._addbase(v, L_R2)

    def _addbase(self, v, base):
        key = (v.base, base)
        if not hasattr(self, "_based"):
            self._based = set()
        if key not in self._based:
            self._based.add(key)
            self.k(f"v_add_u32 {v}, {base}, {v}")
        return 0

    def phaseB(self):
        k = self.k
        S, V = self.S, self.V
        sT0, sT1, sT2 = self.sT0, self.sT1, self.sT2
        Fr, Fi, Fn = V(8, 4), V(8, 4), V(8, 4)
        Gr, Gi, Gn = V(8, 4), V(8, 4), V(8, 4)
        TFc, TFs, TIc, TIs = V(8, 4), V(8, 4), V(8, 4), V(8, 4)
        nf, qf, kf, base, sg = V(), V(), V(), V(), V()
        a, c = V(8, 4), V(8, 4)
        sWf = S()
        k(f"v_and_b32 {nf}, 15, {self.vL}")
        k(f"v_lshlrev_b32 {sg}, 31, {self.vL}")
        k(f"v_cvt_f32_u32 {nf}, {nf}")
        k(f"v_lshrrev_b32 {qf}, 4, {self.vL}")
        k(f"v_cvt_f32_u32 {qf}, {qf}")
        k(f"s_lshl_b32 {sT0}, {self.sW}, 4")
        k(f"v_cvt_f32_u32 {kf}, {sT0}")
        k(f"v_lshrrev_b32 {base}, 16, {sg}")
        k(f"v_or_b32 {sg}, {sg}, {base}")
        k(f"v_readfirstlane_b32 {sWf}, {kf}")
        k(f"v_add_f32 {kf}, {kf}, {nf}")
        k(f"v_mul_f32 {kf}, {f2h(1.0 / 64)}, {kf}")
        k(f"v_mul_f32 {base}, {qf}, {kf}")
        k(f"v_mul_f32 {base}, 0x41000000, {base}")
        for j in range(8):
            self.ang(a[j], kf, j, base)
        for j in range(8):
            k(f"v_cos_f32 {c[j]}, {a[j]}")
            k(f"v_sin_f32 {a[j]}, {a[j]}")
        for j in range(4):
            k(f"v_cvt_pk_bf16_f32 {Fr[j]}, {c[2 * j]}, {c[2 * j + 1]}")
            k(f"v_cvt_pk_bf16_f32 {Fn[j]}, {a[2 * j]}, {a[2 * j + 1]}")
        for j in range(4):
            k(f"v_xor_b32 {Fi[j]}, 0x80008000, {Fn[j]}")
            k(f"v_xor_b32 {Fr[4 + j]}, {sg}, {Fr[j]}")
            k(f"v_xor_b32 {Fn[4 + j]}, {sg}, {Fn[j]}")
            k(f"v_xor_b32 {Fi[4 + j]}, {sg}, {Fi[j]}")
        self.fv(self.tPend)
        k(f"v_mul_f32 {kf}, {f2h(1.0 / 32)}, {kf}")
        k(f"v_mul_f32 {base}, {f2h(1.0 / 64)}, {base}")
        for r in range(8):
            self.ang(a[r], kf, 16 * (r // 4) + r % 4, base)
        for r in range(8):
            k(f"v_cos_f32 {TFc[r]}, {a[r]}")
            k(f"v_sin_f32 {TFs[r]}, {a[r]}")
        k(f"v_mul_f32 {kf}, {f2h(1.0 / 32)}, {nf}")
        k(f"v_mul_f32 {base}, {qf}, {kf}")
        k(f"v_mul_f32 {base}, 4.0, {base}")
        for j in range(4):
            self.ang(a[j], kf, j, base)
        for j in range(4):
            k(f"v_cos_f32 {c[j]}, {a[j]}")
            k(f"v_sin_f32 {a[j]}, {a[j]}")
        for j in range(2):
            k(f"v_cvt_pk_bf16_f32 {Gr[j]}, {c[2 * j]}, {c[2 * j + 1]}")
            k(f"v_cvt_pk_bf16_f32 {Gn[j]}, {a[2 * j]}, {a[2 * j + 1]}")
        for j in range(2):
            k(f"v_xor_b32 {Gr[2 + j]}, {sg}, {Gr[j]}")
            k(f"v_xor_b32 {Gn[2 + j]}, {sg}, {Gn[j]}")
        for j in range(4):
            k(f"v_xor_b32 {Gi[j]}, 0x80008000, {Gn[j]}")
            k(f"v_xor_b32 {Gr[4 + j]}, 0x80000000, {Gr[j]}")
            k(f"v_xor_b32 {Gn[4 + j]}, 0x80000000, {Gn[j]}")
            k(f"v_xor_b32 {Gi[4 + j]}, 0x00008000, {Gn[j]}")
        k(f"v_mul_f32 {qf}, 4.0, {qf}")
        k(f"v_add_f32 {qf}, {sWf}, {qf}")
        for tile in range(2):
            if tile == 0:
                k(f"v_mul_f32 {kf}, {f2h(1.0 / 2048)}, {nf}")
            else:
                k(f"v_add_f32 {kf}, {f2h(16.0 / 2048)}, {kf}")
            k(f"v_mul_f32 {base}, {qf}, {kf}")
            for i in range(4):
                self.ang(a[4 * tile + i], kf, i, base)
        for r in range(8):
            k(f"v_cos_f32 {TIc[r]}, {a[r]}")
            k(f"v_sin_f32 {TIs[r]}, {a[r]}")
        k(f"s_mov_b32 {sT0}, {f2h(2.0 ** -19)}")
        for r in range(8):
            k(f"v_mul_f32 {TIc[r]}, {sT0}, {TIc[r]}")
            k(f"v_mul_f32 {TIs[r]}, {sT0}, {TIs[r]}")
        vg, vw, vrd, vwt, vxw, vxr, vy = V(), V(), V(), V(), V(), V(), V()
        k(f"v_bfe_u32 {a[0]}, {self.vL}, 1, 4")
        k(f"v_lshlrev_b32 {a[0]}, 16, {a[0]}")
        k(f"v_lshrrev_b32 {a[1]}, 5, {self.vL}")
        k(f"v_lshlrev_b32 {a[1]}, 13, {a[1]}")
        k(f"v_and_b32 {a[2]}, 1, {self.vL}")
        k(f"v_lshlrev_b32 {a[3]}, 4, {a[2]}")
        k(f"v_add3_u32 {vg}, {a[0]}, {a[1]}, {a[3]}")
        sZa, sZb = S(), S()
        k(f"s_lshr_b32 {sT0}, {self.sW}, 1")
        k(f"s_lshl_b32 {sT0}, {sT0}, 20")
        k(f"s_and_b32 {sT1}, {self.sW}, 1")
        k(f"s_lshl_b32 {sT1}, {sT1}, 15")
        k(f"s_add_u32 {sT0}, {sT0}, {sT1}")
        k(f"s_lshl_b32 {sT1}, {self.sG}, 5")
        k(f"s_add_u32 {sT0}, {sT0}, {sT1}")
        k(f"s_add_u32 {sZa}, {sT0}, {Z1}")
        k(f"s_add_u32 {sZb}, {sZa}, 16384")
        k(f"v_mul_u32_u24 {a[2]}, 1088, {a[2]}")
        k(f"v_lshrrev_b32 {a[0]}, 1, {self.vL}")
        k(f"v_lshl_add_u32 {a[0]}, {a[0]}, 4, {a[2]}")
        k(f"s_mul_i32 {sT0}, {self.sW}, 2176")
        k(f"s_add_u32 {sT0}, {sT0}, {L_R1}")
        k(f"v_add_u32 {vw}, {sT0}, {a[0]}")
        k(f"v_add_u32 {vrd}, {L_R1}, {self.vL16}")
        k(f"v_and_b32 {a[0]}, 15, {self.vL}")
        k(f"v_lshrrev_b32 {a[1]}, 4, {self.vL}")
        k(f"v_lshl_add_u32 {a[2]}, {a[0]}, 3, {a[1]}")
        k(f"v_mul_u32_u24 {vwt}, 4112, {a[2]}")
        sWa, sWb = S(), S()
        k(f"s_mul_i32 {sT0}, {self.sW}, {128 * 4112}")
        k(f"s_lshl_b32 {sT1}, {self.sG}, 4")
        k(f"s_add_u32 {sT0}, {sT0}, {sT1}")
        k(f"s_add_u32 {sWa}, {sT0}, {WT}")
        k(f"s_add_u32 {sWb}, {sWa}, {4 * 4112}")
        k(f"v_mul_u32_u24 {a[0]}, 160, {a[0]}")
        k(f"v_lshl_add_u32 {vxr}, {a[1]}, 4, {a[0]}")
        k(f"v_add_u32 {vxr}, {L_R2}, {vxr}")
        k(f"v_lshl_add_u32 {vxw}, {a[1]}, 3, {a[0]}")
        k(f"s_lshl_b32 {sT0}, {self.sW}, 5")
        k(f"s_add_u32 {sT0}, {sT0}, {L_R2}")
        k(f"v_add_u32 {vxw}, {sT0}, {vxw}")
        k(f"v_and_b32 {a[0]}, 15, {self.vL}")
        k(f"v_lshlrev_b32 {a[0]}, 8, {a[0]}")
        k(f"v_lshl_add_u32 {vy}, {a[1]}, 4, {a[0]}")
        self.fv(nf, qf, kf, base, sg)
        self.stamp()
        d = V(8, 4)
        self.poll2("z1", d, vg, sZa, vg, sZb, 3)
        self.stamp()
        k(f"ds_write_b128 {vw}, {d[0:4]}")
        k(f"ds_write_b128 {vw}, {d[4:8]} offset:512")
        Wp = V(8, 4)
        Wq = V(8, 4)
        k(f"buffer_load_dwordx4 {Wp[0:4]}, {vwt}, {self.sWS}, {sWa} offen sc1")
        k(f"buffer_load_dwordx4 {Wp[4:8]}, {vwt}, {self.sWS}, {sWb} offen sc1")
        k(f"s_add_u32 {sWa}, {sWa}, 4096")
        k(f"s_add_u32 {sWb}, {sWb}, 4096")
        k(f"s_cmp_eq_u32 {self.sG}, 0")
        k(f"s_cselect_b32 {sWa}, {sWa}, {OOB}")
        k(f"s_cselect_b32 {sWb}, {sWb}, {OOB}")
        k(f"buffer_load_dwordx4 {Wq[0:4]}, {vwt}, {self.sWS}, {sWa} offen sc1")
        k(f"buffer_load_dwordx4 {Wq[4:8]}, {vwt}, {self.sWS}, {sWb} offen sc1")
        self.w2_setup()
        self.w2_load(0, 11)
        k("s_waitcnt lgkmcnt(0)")
        k("s_barrier")
        zr, zi = V(16, 4), V(16, 4)
        T1r, T1i = V(8, 4), V(8, 4)
        Or, Oi = V(8, 4), V(8, 4)
        Bq = V(8, 4)
        sJob = S()
        k(f"s_mov_b32 {sJob}, 0")
        for r in range(0, 8, 2):
            k(f"v_pk_mov_b32 {Or[r:r + 2]}, 0, 0")
            k(f"v_pk_mov_b32 {Oi[r:r + 2]}, 0, 0")
        for tk in range(4):
            k(f"ds_read_b128 {zr[4 * tk:4 * tk + 4]}, {vrd} offset:{tk * 2176}")
        for tk in range(4):
            k(f"ds_read_b128 {zi[4 * tk:4 * tk + 4]}, {vrd} offset:{tk * 2176 + 1088}")
        k("L_job:")
        M = "v_mfma_f32_16x16x32_bf16"
        for tile in range(2):
            for ks in range(2):
                tk = 2 * tile + ks
                k(f"s_waitcnt lgkmcnt({7 - tk})")
                cr = "0" if ks == 0 else f"{T1r[4 * tile:4 * tile + 4]}"
                ci = "0" if ks == 0 else f"{T1i[4 * tile:4 * tile + 4]}"
                k(f"{M} {T1r[4 * tile:4 * tile + 4]}, {zr[4 * tk:4 * tk + 4]}, {Fr[4 * ks:4 * ks + 4]}, {cr}")
                k(f"{M} {T1i[4 * tile:4 * tile + 4]}, {zr[4 * tk:4 * tk + 4]}, {Fi[4 * ks:4 * ks + 4]}, {ci}")
        k(f"s_cmp_eq_u32 {self.sG}, 0")
        k("s_cbranch_scc1 L_noim")
        for tile in range(2):
            for ks in range(2):
                tk = 2 * tile + ks
                k(f"s_waitcnt lgkmcnt({3 - tk})")
                k(f"{M} {T1r[4 * tile:4 * tile + 4]}, {zi[4 * tk:4 * tk + 4]}, {Fn[4 * ks:4 * ks + 4]}, {T1r[4 * tile:4 * tile + 4]}")
                k(f"{M} {T1i[4 * tile:4 * tile + 4]}, {zi[4 * tk:4 * tk + 4]}, {Fr[4 * ks:4 * ks + 4]}, {T1i[4 * tile:4 * tile + 4]}")
        k("L_noim:")
        Wr, Wi = a, c
        k("s_waitcnt vmcnt(24)")
        for r in range(8):
            k(f"v_lshlrev_b32 {Wr[r]}, 16, {Wp[r]}")
            k(f"v_and_b32 {Wi[r]}, 0xffff0000, {Wp[r]}")
        tmp = d
        for r in range(0, 8, 2):
            tt = tmp[4 * ((r // 2) % 2):4 * ((r // 2) % 2) + 4]
            self.cmul_pk(None, T1i[r:r + 2], T1r[r:r + 2], T1i[r:r + 2], TFc[r:r + 2], TFs[r:r + 2], True, tt)
            k(f"v_cvt_pk_bf16_f32 {Bq[r // 2]}, {tt[0]}, {tt[1]}")
            k(f"v_cvt_pk_bf16_f32 {Bq[4 + r // 2]}, {T1i[r]}, {T1i[r + 1]}")
        for t2 in range(2):
            k(f"{M} {T1r[4 * t2:4 * t2 + 4]}, {Gr[4 * t2:4 * t2 + 4]}, {Bq[0:4]}, 0")
            k(f"{M} {T1i[4 * t2:4 * t2 + 4]}, {Gi[4 * t2:4 * t2 + 4]}, {Bq[0:4]}, 0")
        for t2 in range(2):
            k(f"{M} {T1r[4 * t2:4 * t2 + 4]}, {Gn[4 * t2:4 * t2 + 4]}, {Bq[4:8]}, {T1r[4 * t2:4 * t2 + 4]}")
            k(f"{M} {T1i[4 * t2:4 * t2 + 4]}, {Gr[4 * t2:4 * t2 + 4]}, {Bq[4:8]}, {T1i[4 * t2:4 * t2 + 4]}")
        for r in range(0, 8, 2):
            k(f"v_pk_fma_f32 {Or[r:r + 2]}, {T1r[r:r + 2]}, {Wr[r:r + 2]}, {Or[r:r + 2]}")
            k(f"v_pk_fma_f32 {Oi[r:r + 2]}, {T1r[r:r + 2]}, {Wi[r:r + 2]}, {Oi[r:r + 2]}")
            k(f"v_pk_fma_f32 {Or[r:r + 2]}, {T1i[r:r + 2]}, {Wi[r:r + 2]}, {Or[r:r + 2]} neg_lo:[1,0,0] neg_hi:[1,0,0]")
            k(f"v_pk_fma_f32 {Oi[r:r + 2]}, {T1i[r:r + 2]}, {Wr[r:r + 2]}, {Oi[r:r + 2]}")
        k(f"s_or_b32 {sT0}, {self.sG}, {sJob}")
        k(f"s_cmp_lg_u32 {sT0}, 0")
        k("s_cbranch_scc1 L_jobdone")
        k(f"s_mov_b32 {sJob}, 1")
        k("s_waitcnt vmcnt(22) lgkmcnt(0)")
        for r in range(0, 16, 2):
            k(f"v_pk_mov_b32 {zr[r:r + 2]}, {zi[r:r + 2]}, {zi[r:r + 2]} op_sel:[0,1]")
        for r in range(0, 8, 2):
            k(f"v_pk_mov_b32 {Wp[r:r + 2]}, {Wq[r:r + 2]}, {Wq[r:r + 2]} op_sel:[0,1]")
        k("s_branch L_job")
        k("L_jobdone:")
        for r in range(0, 8, 2):
            k(f"v_cvt_pk_bf16_f32 {Bq[r // 2]}, {Or[r]}, {Or[r + 1]}")
            k(f"v_cvt_pk_bf16_f32 {Bq[4 + r // 2]}, {Oi[r]}, {Oi[r + 1]}")
        for ts in range(2):
            k(f"{M} {T1r[4 * ts:4 * ts + 4]}, {Bq[0:4]}, {Gr[4 * ts:4 * ts + 4]}, 0")
            k(f"{M} {T1i[4 * ts:4 * ts + 4]}, {Bq[0:4]}, {Gn[4 * ts:4 * ts + 4]}, 0")
        for ts in range(2):
            k(f"{M} {T1r[4 * ts:4 * ts + 4]}, {Bq[4:8]}, {Gi[4 * ts:4 * ts + 4]}, {T1r[4 * ts:4 * ts + 4]}")
            k(f"{M} {T1i[4 * ts:4 * ts + 4]}, {Bq[4:8]}, {Gr[4 * ts:4 * ts + 4]}, {T1i[4 * ts:4 * ts + 4]}")
        for r in range(0, 8, 2):
            tt = tmp[4 * ((r // 2) % 2):4 * ((r // 2) % 2) + 4]
            self.cmul_pk(None, T1i[r:r + 2], T1r[r:r + 2], T1i[r:r + 2], TIc[r:r + 2], TIs[r:r + 2], False, tt)
            k(f"v_cvt_pk_bf16_f32 {Or[r // 2]}, {tt[0]}, {tt[1]}")
            k(f"v_cvt_pk_bf16_f32 {Or[4 + r // 2]}, {T1i[r]}, {T1i[r + 1]}")
        for cc in range(2):
            for ts in range(2):
                k(f"ds_write_b64 {vxw}, {Or[4 * cc + 2 * ts:4 * cc + 2 * ts + 2]} offset:{cc * 5120 + ts * 2560}")
        k("s_waitcnt lgkmcnt(0)")
        k("s_barrier")
        for tk in range(4):
            ts, ks = tk // 2, tk % 2
            k(f"ds_read_b128 {zr[4 * tk:4 * tk + 4]}, {vxr} offset:{ts * 2560 + 64 * ks}")
            k(f"ds_read_b128 {zi[4 * tk:4 * tk + 4]}, {vxr} offset:{5120 + ts * 2560 + 64 * ks}")
        for tk in range(4):
            ts, ks = tk // 2, tk % 2
            cr = "0" if ks == 0 else f"{T1r[4 * ts:4 * ts + 4]}"
            ci = "0" if ks == 0 else f"{T1i[4 * ts:4 * ts + 4]}"
            k(f"s_waitcnt lgkmcnt({7 - 2 * tk})")
            k(f"{M} {T1r[4 * ts:4 * ts + 4]}, {Fr[4 * ks:4 * ks + 4]}, {zr[4 * tk:4 * tk + 4]}, {cr}")
            k(f"{M} {T1i[4 * ts:4 * ts + 4]}, {Fn[4 * ks:4 * ks + 4]}, {zr[4 * tk:4 * tk + 4]}, {ci}")
            k(f"s_waitcnt lgkmcnt({6 - 2 * tk})")
            k(f"{M} {T1r[4 * ts:4 * ts + 4]}, {Fi[4 * ks:4 * ks + 4]}, {zi[4 * tk:4 * tk + 4]}, {T1r[4 * ts:4 * ts + 4]}")
            k(f"{M} {T1i[4 * ts:4 * ts + 4]}, {Fr[4 * ks:4 * ks + 4]}, {zi[4 * tk:4 * tk + 4]}, {T1i[4 * ts:4 * ts + 4]}")
        k(f"s_lshl_b32 {sT0}, {self.sW}, 6")
        k(f"s_add_u32 {sT0}, {sT0}, {self.sY2}")
        k(f"s_add_u32 {sT1}, {sT0}, 4096")
        for ts in range(2):
            for i in range(4):
                k(f"v_cvt_pk_bf16_f32 {d[4 * ts + i]}, {T1r[4 * ts + i]}, {T1i[4 * ts + i]}")
            k(f"v_min_u32 {d[4 * ts]}, -2, {d[4 * ts]}")
            k(f"buffer_store_dwordx4 {d[4 * ts:4 * ts + 4]}, {vy}, {self.sWS}, {sT0 if ts == 0 else sT1} offen sc1")
        self.stamp()
        self.fv(Fr, Fi, Fn, Gr, Gi, Gn, TFc, TFs, TIc, TIs, a, c, vg, vw, vrd, vwt, vxw, vxr, vy, Wp, Wq, zr, zi,
                T1r, T1i, Or, Oi, Bq)
        self.fs(sWf, sZa, sZb, sWa, sWb, sJob)
        self.tPend = d

    def w2_setup(self):
        k = self.k
        S = self.S
        self.aW2 = self.k.a.get(176, 4)
        self.sK0 = S()
        self.sW2o = S()
        sT0, sT1 = self.sT0, self.sT1
        k(f"s_mul_i32 {sT0}, {self.sW}, 22")
        k(f"s_mul_i32 {sT1}, {self.sW}, 21")
        k(f"s_add_u32 {sT1}, {sT1}, 1")
        k(f"s_min_u32 {self.sK0}, {sT0}, {sT1}")
        k(f"s_lshl_b32 {sT0}, {self.sK0}, 14")
        k(f"s_and_b32 {sT1}, {self.sY}, 7")
        k(f"s_lshl_b32 {sT1}, {sT1}, 11")
        k(f"s_add_u32 {sT0}, {sT0}, {sT1}")
        k(f"s_add_u32 {self.sW2o}, {sT0}, {W2F}")

    def w2_load(self, s0, s1):
        k = self.k
        for s in range(s0, s1):
            for mb in range(2):
                k(f"buffer_load_dwordx4 {self.aW2[8 * s + 4 * mb:8 * s + 4 * mb + 4]}, {self.vL16}, {self.sWS}, "
                  f"{self.sW2o} offen offset:{1024 * mb} sc1")
            k(f"s_add_u32 {self.sW2o}, {self.sW2o}, 16384")

    def phaseC(self):
        k = self.k
        S, V = self.S, self.V
        sT0, sT1, sT2 = self.sT0, self.sT1, self.sT2
        BAr, BAi = V(8, 4), V(8, 4)
        TCc, TCs = V(16, 4), V(16, 4)
        BB = V(16, 4)
        ga, cb, sb = V(8, 4), V(8, 4), V(8, 4)
        xf = V(16, 4)
        kf, hf, base, sg, m0_, m1_ = V(), V(), V(), V(), V(), V()
        a, c = V(16, 4), V(8, 4)
        vsign = V()
        vm = V()
        k(f"v_and_b32 {a[0]}, 31, {self.vL}")
        k(f"v_lshlrev_b32 {vm}, 6, {a[0]}")
        k(f"v_lshrrev_b32 {a[1]}, 1, {self.vL}")
        k(f"v_and_b32 {a[1]}, 16, {a[1]}")
        k(f"v_add_u32 {vm}, {vm}, {a[1]}")
        k(f"s_mov_b32 {sT0}, {MODN}")
        k(f"s_mov_b32 {sT1}, {MODN + 4096}")
        for ap in range(2):
            k(f"buffer_load_dwordx4 {ga[4 * ap:4 * ap + 4]}, {vm}, {self.sWS}, {sT0} offen offset:{32 * ap} sc1")
            k(f"buffer_load_dwordx4 {sb[4 * ap:4 * ap + 4]}, {vm}, {self.sWS}, {sT0} offen offset:{2048 + 32 * ap} sc1")
            k(f"buffer_load_dwordx4 {cb[4 * ap:4 * ap + 4]}, {vm}, {self.sWS}, {sT1} offen offset:{32 * ap} sc1")
        k(f"v_lshrrev_b32 {vm}, 1, {vm}")
        k(f"v_add_u32 {vm}, {self.sXS}, {vm}")
        for row in range(2):
            for ap in range(2):
                k(f"ds_read_b64 {c[4 * row + 2 * ap:4 * row + 2 * ap + 2]}, {vm} offset:{row * 1152 + 16 * ap}")
        k(f"v_and_b32 {kf}, 15, {self.vL}")
        k(f"v_cvt_f32_u32 {kf}, {kf}")
        k(f"v_lshrrev_b32 {hf}, 5, {self.vL}")
        k(f"v_cvt_f32_u32 {hf}, {hf}")
        k(f"v_bfe_i32 {m1_}, {self.vL}, 4, 1")
        k(f"v_not_b32 {m0_}, {m1_}")
        k(f"v_lshlrev_b32 {sg}, 31, {self.vL}")
        k(f"v_or_b32 {vsign}, 1.0, {sg}")
        k(f"v_cmp_gt_u32 vcc, 32, {self.vL}")
        k(f"v_cndmask_b32 {vsign}, 0, {vsign}, vcc")
        k(f"v_lshrrev_b32 {base}, 16, {sg}")
        k(f"v_or_b32 {sg}, {sg}, {base}")
        k("s_waitcnt lgkmcnt(0)")
        for i in range(8):
            k(f"v_lshlrev_b32 {xf[2 * i]}, 16, {c[i]}")
            k(f"v_and_b32 {xf[2 * i + 1]}, 0xffff0000, {c[i]}")
        self.fv(self.tPend)
        k(f"v_mul_f32 {kf}, {f2h(1.0 / 16)}, {kf}")
        k(f"v_mul_f32 {base}, {hf}, {kf}")
        k(f"v_add_f32 {base}, {base}, {base}")
        for q in range(4):
            self.ang(a[q], kf, 4 * (q // 2) + q % 2, base)
        for q in range(4):
            k(f"v_cos_f32 {c[q]}, {a[q]}")
            k(f"v_sin_f32 {a[q]}, {a[q]}")
        for q in range(4):
            k(f"v_cvt_pk_bf16_f32 {c[4]}, {c[q]}, -{a[q]}")
            k(f"v_cvt_pk_bf16_f32 {c[5]}, {a[q]}, {c[q]}")
            k(f"v_and_b32 {BAr[2 * q]}, {m0_}, {c[4]}")
            k(f"v_and_b32 {BAr[2 * q + 1]}, {m1_}, {c[4]}")
            k(f"v_and_b32 {BAi[2 * q]}, {m0_}, {c[5]}")
            k(f"v_and_b32 {BAi[2 * q + 1]}, {m1_}, {c[5]}")
        k(f"v_mul_f32 {kf}, {f2h(1.0 / 32)}, {kf}")
        k(f"v_mul_f32 {base}, {f2h(1.0 / 16)}, {base}")
        for r in range(16):
            self.ang(a[r], kf, 8 * (r // 4) + r % 4, base)
        for r in range(16):
            k(f"v_cos_f32 {TCc[r]}, {a[r]}")
            k(f"v_sin_f32 {TCs[r]}, {a[r]}")
        k(f"v_and_b32 {kf}, 31, {self.vL}")
        k(f"v_cvt_f32_u32 {kf}, {kf}")
        k(f"v_mul_f32 {kf}, {f2h(1.0 / 32)}, {kf}")
        k(f"v_mul_f32 {base}, {hf}, {kf}")
        k(f"v_mul_f32 {base}, 4.0, {base}")
        for r in range(8):
            self.ang(a[r], kf, 8 * (r // 4) + r % 4, base)
        for r in range(8):
            k(f"v_cos_f32 {c[r]}, {a[r]}")
            k(f"v_sin_f32 {a[r]}, {a[r]}")
        for tt in range(2):
            for j in range(2):
                k(f"v_cvt_pk_bf16_f32 {BB[4 * tt + j]}, {c[4 * tt + 2 * j]}, {c[4 * tt + 2 * j + 1]}")
                k(f"v_cvt_pk_bf16_f32 {BB[4 * tt + 2 + j]}, -{a[4 * tt + 2 * j]}, -{a[4 * tt + 2 * j + 1]}")
        for j in range(8):
            k(f"v_xor_b32 {BB[8 + j]}, {sg}, {BB[j]}")
        vg, vw, vrd, vny, vx1, vhw0, vhw1, vhr0, vhr1 = (V() for _ in range(9))
        sYa, sYb = S(), S()
        k(f"v_lshrrev_b32 {a[0]}, 1, {self.vL}")
        k(f"v_and_b32 {a[1]}, 1, {self.vL}")
        k(f"v_lshlrev_b32 {a[2]}, 13, {a[0]}")
        k(f"v_lshl_add_u32 {vg}, {a[1]}, 4, {a[2]}")
        k(f"s_lshl_b32 {sT0}, {self.sW}, 19")
        k(f"s_lshl_b32 {sT1}, {self.sG}, 5")
        k(f"s_add_u32 {sT0}, {sT0}, {sT1}")
        k(f"s_add_u32 {sYa}, {sT0}, {Y2}")
        k(f"s_add_u32 {sYb}, {sYa}, {32 * 8192}")
        k(f"v_mul_u32_u24 {a[1]}, 4160, {a[1]}")
        k(f"v_lshl_add_u32 {a[1]}, {a[0]}, 4, {a[1]}")
        k(f"s_lshl_b32 {sT0}, {self.sW}, 10")
        k(f"s_add_u32 {sT0}, {sT0}, {L_R1}")
        k(f"v_add_u32 {vw}, {sT0}, {a[1]}")
        k(f"s_lshr_b32 {sT0}, {self.sW}, 1")
        k(f"s_mul_i32 {sT0}, {sT0}, 4160")
        k(f"s_and_b32 {sT1}, {self.sW}, 1")
        k(f"s_lshl_b32 {sT1}, {sT1}, 3")
        k(f"s_add_u32 {sT0}, {sT0}, {sT1}")
        k(f"s_add_u32 {sT0}, {sT0}, {L_R1}")
        k(f"v_and_b32 {a[0]}, 31, {self.vL}")
        k(f"v_lshrrev_b32 {a[1]}, 5, {self.vL}")
        k(f"v_lshlrev_b32 {a[2]}, 10, {a[1]}")
        k(f"v_lshl_add_u32 {a[2]}, {a[0]}, 4, {a[2]}")
        k(f"v_add_u32 {vrd}, {sT0}, {a[2]}")
        k(f"v_and_b32 {a[2]}, 4, {m1_}")
        k(f"v_add_u32 {vny}, {sT0}, {a[2]}")
        k(f"v_lshl_add_u32 {a[2]}, {a[0]}, 1, {a[1]}")
        k(f"v_lshlrev_b32 {vx1}, 4, {a[2]}")
        k(f"v_lshlrev_b32 {a[2]}, 7, {a[2]}")
        k(f"v_add_u32 {a[2]}, {L_R2}, {a[2]}")
        k(f"s_lshl_b32 {sT0}, {self.sW}, 1")
        k(f"v_add_u32 {a[3]}, {sT0}, {a[0]}")
        k(f"v_and_b32 {a[4]}, 7, {a[3]}")
        k(f"v_lshl_add_u32 {vhw0}, {a[4]}, 4, {a[2]}")
        k(f"v_add_u32 {a[3]}, 1, {a[3]}")
        k(f"v_and_b32 {a[4]}, 7, {a[3]}")
        k(f"v_lshl_add_u32 {vhw1}, {a[4]}, 4, {a[2]}")
        k(f"v_lshrrev_b32 {a[2]}, 3, {self.vL}")
        k(f"v_lshlrev_b32 {a[2]}, 7, {a[2]}")
        k(f"s_lshl_b32 {sT0}, {self.sW}, 11")
        k(f"s_add_u32 {sT0}, {sT0}, {L_R2}")
        k(f"v_add_u32 {a[2]}, {sT0}, {a[2]}")
        k(f"v_lshrrev_b32 {a[3]}, 4, {self.vL}")
        k(f"v_add_u32 {a[3]}, {a[3]}, {self.vL}")
        k(f"v_and_b32 {a[4]}, 7, {a[3]}")
        k(f"v_lshl_add_u32 {vhr0}, {a[4]}, 4, {a[2]}")
        k(f"v_xor_b32 {vhr1}, 64, {vhr0}")
        self.fv(kf, hf, base, sg, m0_, m1_, vm)
        self.stamp()
        d = V(8, 4)
        self.poll2("y2", d, vg, sYa, vg, sYb, 4)
        self.stamp()
        k(f"ds_write_b128 {vw}, {d[0:4]}")
        k(f"ds_write_b128 {vw}, {d[4:8]} offset:512")
        self.w2_load(11, 22)
        k("s_waitcnt lgkmcnt(0)")
        k("s_barrier")
        A = d
        ny = V()
        for q in range(4):
            k(f"ds_read_b64 {A[2 * q:2 * q + 2]}, {vrd} offset:{2048 * (q // 2) + 512 * (q % 2)}")
        k(f"ds_read_u16 {ny}, {vny} offset:2")
        Dr, Di = V(16, 4), V(16, 4)
        M = "v_mfma_f32_32x32x16_bf16"
        k("s_waitcnt lgkmcnt(3)")
        k(f"{M} {Dr}, {A[0:4]}, {BAr[0:4]}, 0")
        k(f"{M} {Di}, {A[0:4]}, {BAi[0:4]}, 0")
        k("s_waitcnt lgkmcnt(1)")
        k(f"{M} {Dr}, {A[4:8]}, {BAr[4:8]}, {Dr}")
        k(f"{M} {Di}, {A[4:8]}, {BAi[4:8]}, {Di}")
        k("s_waitcnt lgkmcnt(0)")
        k(f"v_lshlrev_b32 {ny}, 16, {ny}")
        k(f"v_fmac_f32 {Dr[0]}, {vsign}, {ny}")
        Aq = a
        for r in range(0, 16, 2):
            tt = c[4 * ((r // 2) % 2):4 * ((r // 2) % 2) + 4]
            self.cmul_pk(None, Di[r:r + 2], Dr[r:r + 2], Di[r:r + 2], TCc[r:r + 2], TCs[r:r + 2], False, tt)
            t_, hb = r // 4, (r // 2) % 2
            k(f"v_cvt_pk_bf16_f32 {Aq[4 * t_ + hb]}, {tt[0]}, {tt[1]}")
            k(f"v_cvt_pk_bf16_f32 {Aq[4 * t_ + 2 + hb]}, {Di[r]}, {Di[r + 1]}")
        Y = Dr
        for t_ in range(4):
            k(f"{M} {Y}, {Aq[4 * t_:4 * t_ + 4]}, {BB[4 * t_:4 * t_ + 4]}, {'0' if t_ == 0 else Y}")
        for r in range(0, 16, 2):
            k(f"v_pk_fma_f32 {Y[r:r + 2]}, {Y[r:r + 2]}, {ga[r % 8:r % 8 + 2]}, {xf[r:r + 2]}")
        P = d
        for r in range(0, 16, 2):
            k(f"v_cvt_pk_bf16_f32 {P[r // 2]}, {Y[r]}, {Y[r + 1]}")
        t = c
        for row in range(2):
            k(f"v_pk_add_f32 {t[4 * row:4 * row + 2]}, {Y[8 * row:8 * row + 2]}, {Y[8 * row + 2:8 * row + 4]}")
            k(f"v_pk_add_f32 {t[4 * row + 2:4 * row + 4]}, {Y[8 * row + 4:8 * row + 6]}, {Y[8 * row + 6:8 * row + 8]}")
        for row in range(2):
            k(f"v_min_u32 {P[4 * row]}, -2, {P[4 * row]}")
            k(f"buffer_store_dwordx4 {P[4 * row:4 * row + 4]}, {vx1}, {self.sWS}, {self.sX1o} offen offset:{1024 * row} sc1")
        for row in range(2):
            k(f"v_pk_add_f32 {t[4 * row:4 * row + 2]}, {t[4 * row:4 * row + 2]}, {t[4 * row + 2:4 * row + 4]}")
        for row in range(2):
            k(f"v_add_f32 {t[4 * row]}, {t[4 * row]}, {t[4 * row + 1]}")
        self.wave_sum63([t[0], t[4]])
        sM = [S(2), S(2)]
        for row in range(2):
            k(f"v_mul_f32 {t[4 * row]}, {f2h(-1.0 / 512)}, {t[4 * row]}")
        for row in range(2):
            k(f"v_readlane_b32 {sM[row][0]}, {t[4 * row]}, 63")
        for r in range(0, 16, 2):
            k(f"v_pk_add_f32 {Y[r:r + 2]}, {Y[r:r + 2]}, {sM[r // 8]} op_sel_hi:[1,0]")
        for row in range(2):
            k(f"v_pk_mul_f32 {t[4 * row:4 * row + 2]}, {Y[8 * row:8 * row + 2]}, {Y[8 * row:8 * row + 2]}")
        for j in range(2, 8, 2):
            for row in range(2):
                k(f"v_pk_fma_f32 {t[4 * row:4 * row + 2]}, {Y[8 * row + j:8 * row + j + 2]}, "
                  f"{Y[8 * row + j:8 * row + j + 2]}, {t[4 * row:4 * row + 2]}")
        for row in range(2):
            k(f"v_add_f32 {t[4 * row]}, {t[4 * row]}, {t[4 * row + 1]}")
        self.wave_sum63([t[0], t[4]])
        for row in range(2):
            k(f"v_mov_b32 {t[4 * row + 1]}, {f2h(1e-5)}")
            k(f"v_fmac_f32 {t[4 * row + 1]}, {f2h(1.0 / 512)}, {t[4 * row]}")
        for row in range(2):
            k(f"v_rsq_f32 {t[4 * row]}, {t[4 * row + 1]}")
        for row in range(2):
            k(f"v_readlane_b32 {sM[row][0]}, {t[4 * row]}, 63")
        for r in range(0, 16, 2):
            k(f"v_pk_mul_f32 {Y[r:r + 2]}, {Y[r:r + 2]}, {sM[r // 8]} op_sel_hi:[1,0]")
        for r in range(0, 16, 2):
            k(f"v_pk_fma_f32 {Y[r:r + 2]}, {Y[r:r + 2]}, {cb[r % 8:r % 8 + 2]}, {sb[r % 8:r % 8 + 2]}")
        Q = Di
        for r in range(0, 16, 2):
            k(f"v_cvt_pk_bf16_f32 {Q[r // 2]}, {Y[r]}, {Y[r + 1]}")
        k(f"ds_write_b128 {vhw0}, {Q[0:4]}")
        k(f"ds_write_b128 {vhw1}, {Q[4:8]}")
        k("s_waitcnt lgkmcnt(0)")
        k("s_barrier")
        k(f"ds_read_b128 {Q[8:12]}, {vhr0}")
        k(f"ds_read_b128 {Q[12:16]}, {vhr1} offset:1024")
        k(f"s_add_u32 {sT0}, {self.sH2o}, 4096")
        k("s_waitcnt lgkmcnt(1)")
        k(f"v_min_u32 {Q[8]}, -2, {Q[8]}")
        k(f"buffer_store_dwordx4 {Q[8:12]}, {self.vH2o}, {self.sWS}, {self.sH2o} offen sc1")
        k("s_waitcnt lgkmcnt(0)")
        k(f"v_min_u32 {Q[12]}, -2, {Q[12]}")
        k(f"buffer_store_dwordx4 {Q[12:16]}, {self.vH2o}, {self.sWS}, {sT0} offen sc1")
        self.stamp()
        k("s_waitcnt vmcnt(0)")
        self.stamp()
        self.fv(BAr, BAi, TCc, TCs, BB, ga, cb, sb, xf, a, c, vsign, vg, vw, vrd, vny, vx1, vhw0, vhw1, vhr0, vhr1,
                d, ny, Dr, Di, self.vH2o, self.vPz, self.vTid16, self.vTag)
        self.fs(sYa, sYb, sM[0], sM[1])

    def grouped(self, name, ngroups, issue, regs, counts, body, code, extra_young=0, after_issue=None):
        k = self.k
        cur = self.S()
        k(f"s_mov_b32 {cur}, 0")
        k(f"s_mov_b32 {self.sSpin}, 0")
        for g in range(ngroups):
            k(f"L_{name}_iss{g}:")
            issue(g)
        k(f"s_cmp_eq_u32 {self.sSpin}, 0")
        k(f"s_cbranch_scc1 L_{name}_first")
        k("s_waitcnt vmcnt(0)")
        for g in range(1, ngroups):
            k(f"s_cmp_eq_u32 {cur}, {g}")
            k(f"s_cbranch_scc1 L_{name}_chk{g}")
        k(f"s_branch L_{name}_chk0")
        for g in range(ngroups):
            k(f"L_{name}_rty{g}:")
            k(f"s_mov_b32 {cur}, {g}")
            k("s_waitcnt vmcnt(0)")
            k(f"s_add_u32 {self.sSpin}, {self.sSpin}, 1")
            k(f"s_cmp_lt_u32 {self.sSpin}, {SPIN_MAX}")
            k(f"s_cbranch_scc1 L_{name}_iss{g}")
            k(f"s_branch L_{name}_dead")
        k(f"L_{name}_dead:")
        self.timeout_block(code)
        k(f"L_{name}_first:")
        if after_issue:
            after_issue()
        for g in range(ngroups):
            k(f"L_{name}_chk{g}:")
            k(f"s_waitcnt vmcnt({sum(counts[g + 1:]) + extra_young})")
            r = regs(g)
            t = self.vT0
            k(f"v_max3_u32 {t}, {r[0]}, {r[1]}, {r[2] if len(r) > 2 else r[1]}")
            for i in range(3, len(r), 2):
                k(f"v_max3_u32 {t}, {t}, {r[i]}, {r[i + 1] if i + 1 < len(r) else r[i]}")
            k(f"v_cmp_eq_u32 vcc, -1, {t}")
            k(f"s_cbranch_vccnz L_{name}_rty{g}")
            body(g)
        self.fs(cur)

    def gemm1(self):
        k = self.k
        S, V = self.S, self.V
        sT0, sT1 = self.sT0, self.sT1
        Hb = V(128, 4)
        acc = [V(16, 4) for _ in range(3)]
        Af = [[V(4, 4) for _ in range(3)] for _ in range(2)]
        vA1 = V()
        sH = [S() for _ in range(8)]
        sN3 = S()
        k(f"v_add_u32 {vA1}, 49152, {self.vTrB}")
        k(f"s_lshl_b32 {sT0}, {self.sR}, 2")
        k(f"s_add_u32 {sT0}, {sT0}, {self.sW}")
        k(f"s_lshl_b32 {sT0}, {sT0}, 15")
        k(f"s_add_u32 {sH[0]}, {sT0}, {H2}")
        for i in range(1, 8):
            k(f"s_add_u32 {sH[i]}, {sH[i - 1]}, 4096")
        k(f"s_and_b32 {sT0}, {self.sY}, 15")
        k(f"s_cmp_lt_u32 {sT0}, 11")
        k(f"s_cselect_b32 {sN3}, 1, 0")
        M = "v_mfma_f32_32x32x16_bf16"

        def lds_reads(t):
            base = self.vTrB if t < 16 else vA1
            out = []
            for fb in range(3):
                off = (t % 16) * 3072 + fb * 64
                out.append(f"ds_read_b64_tr_b16 {Af[t % 2][fb][0:2]}, {base} offset:{off}")
                out.append(f"ds_read_b64_tr_b16 {Af[t % 2][fb][2:4]}, {base} offset:{off + 1536}")
            return out

        def issue(g):
            for t in range(8 * g, 8 * g + 8):
                k(f"buffer_load_dwordx4 {Hb[4 * t:4 * t + 4]}, {self.vL16}, {self.sWS}, {sH[t // 4]} offen "
                  f"offset:{1024 * (t % 4)} sc1")

        def first():
            for x in lds_reads(0):
                k(x)

        def body(g):
            for t in range(8 * g, 8 * g + 8):
                nxt = lds_reads(t + 1) if t < 31 else []
                for fb in range(3):
                    for x in nxt[2 * fb:2 * fb + 2]:
                        k(x)
                    if fb == 0:
                        k(f"s_waitcnt lgkmcnt({2 if t < 31 else 0})")
                    k(f"{M} {acc[fb]}, {Af[t % 2][fb]}, {Hb[4 * t:4 * t + 4]}, {'0' if t == 0 else acc[fb]}")

        self.stamp()
        self.grouped("h2", 4, issue, lambda g: [Hb[4 * t] for t in range(8 * g, 8 * g + 8)], [8] * 4, body, 5,
                     after_issue=first)
        self.stamp()
        k("s_barrier")
        e = V(8, 4)
        P = Hb
        for fb in range(3):
            if fb == 2:
                k(f"s_cmp_eq_u32 {sN3}, 0")
                k("s_cbranch_scc1 L_nofb2")
            x = acc[fb]
            for half in range(2):
                r0 = 8 * half
                for j in range(0, 8, 2):
                    k(f"v_pk_mul_f32 {e[j:j + 2]}, {x[r0 + j:r0 + j + 2]}, {self.sNL2E} op_sel_hi:[1,0]")
                for j in range(8):
                    k(f"v_exp_f32 {e[j]}, {e[j]}")
                for j in range(0, 8, 2):
                    k(f"v_pk_add_f32 {e[j:j + 2]}, {e[j:j + 2]}, 1.0 op_sel_hi:[1,0]")
                for j in range(8):
                    k(f"v_rcp_f32 {e[j]}, {e[j]}")
                for j in range(0, 8, 2):
                    k(f"v_pk_mul_f32 {e[j:j + 2]}, {e[j:j + 2]}, {x[r0 + j:r0 + j + 2]}")
                q = P[8 * fb + 4 * half:8 * fb + 4 * half + 4]
                for j in range(4):
                    k(f"v_cvt_pk_bf16_f32 {q[j]}, {e[2 * j]}, {e[2 * j + 1]}")
                k(f"v_min_u32 {q[0]}, -2, {q[0]}")
                so = self.sH1o if fb < 2 else self.sH1o2
                k(f"buffer_store_dwordx4 {q}, {self.vL16}, {self.sWS}, {so} offen offset:{1024 * ((2 * fb + half) % 4)} sc1")
        k("L_nofb2:")
        self.stamp()
        k("s_waitcnt vmcnt(0)")
        self.stamp()
        self.fv(Hb, *acc, *Af[0], *Af[1], vA1, e, self.vTrB)
        self.fs(*sH, sN3)

    def gemm2(self):
        k = self.k
        S, V = self.S, self.V
        sT0, sT1, sT2 = self.sT0, self.sT1, self.sT2
        Hb = V(176, 4)
        acc = [[V(16, 4) for _ in range(2)] for _ in range(2)]
        sB = [[S() for _ in range(6)] for _ in range(2)]
        sRT = S()
        k(f"s_lshr_b32 {sT0}, {self.sY}, 3")
        k(f"s_lshl_b32 {sRT}, {self.sXc}, 2")
        k(f"s_add_u32 {sRT}, {sRT}, {sT0}")
        k(f"s_mul_i32 {sT0}, {sRT}, 172")
        k(f"s_add_u32 {sT0}, {sT0}, {self.sK0}")
        k(f"s_lshl_b32 {sT0}, {sT0}, 10")
        k(f"s_add_u32 {sB[0][0]}, {sT0}, {H1}")
        k(f"s_add_u32 {sB[1][0]}, {sB[0][0]}, {86 * 1024}")
        for i in range(1, 6):
            for nb in range(2):
                k(f"s_add_u32 {sB[nb][i]}, {sB[nb][i - 1]}, 4096")
        M = "v_mfma_f32_32x32x16_bf16"
        groups = [[0, 1, 2, 3], [4, 5, 6, 7], [8, 9, 10, 11, 12], [13, 14, 15, 16, 17], [18, 19, 20, 21]]

        def issue(g):
            for s in groups[g]:
                for nb in range(2):
                    k(f"buffer_load_dwordx4 {Hb[8 * s + 4 * nb:8 * s + 4 * nb + 4]}, {self.vL16}, {self.sWS}, "
                      f"{sB[nb][s // 4]} offen offset:{1024 * (s % 4)} sc1")

        def step(s, first):
            for mb in range(2):
                for nb in range(2):
                    k(f"{M} {acc[mb][nb]}, {self.aW2[8 * s + 4 * mb:8 * s + 4 * mb + 4]}, "
                      f"{Hb[8 * s + 4 * nb:8 * s + 4 * nb + 4]}, {'0' if first else acc[mb][nb]}")

        def body(g):
            for s in groups[g]:
                if s == 0:
                    step(1, True)
                    k(f"s_cmp_ge_u32 {self.sW}, 2")
                    k("s_cbranch_scc1 L_noslot0")
                    step(0, False)
                    k("L_noslot0:")
                elif s > 1:
                    step(s, False)

        self.grouped("h1", len(groups), issue,
                     lambda g: [Hb[8 * s + 4 * nb] for s in groups[g] for nb in range(2)],
                     [2 * len(x) for x in groups], body, 6)
        self.stamp()
        x1 = Hb[0:8]
        gb = Hb[8:24]
        vx, vgb, vo, vred = Hb[24], Hb[25], Hb[26], Hb[27]
        tq = Hb[28:32]
        sX, sG_, sO = sB[0][0], sB[0][1], sB[0][2]
        k(f"v_and_b32 {tq[0]}, 31, {self.vL}")
        k(f"v_lshrrev_b32 {tq[1]}, 5, {self.vL}")
        k(f"v_lshlrev_b32 {vgb}, 4, {tq[1]}")
        k(f"v_lshl_add_u32 {vx}, {tq[0]}, 10, {vgb}")
        k(f"v_lshl_add_u32 {vo}, {tq[0]}, 15, {vgb}")
        k(f"s_and_b32 {sT0}, {self.sY}, 7")
        k(f"s_lshl_b32 {sT0}, {sT0}, 1")
        k(f"s_and_b32 {sT1}, {self.sW}, 1")
        k(f"s_add_u32 {sT0}, {sT0}, {sT1}")
        k(f"s_lshl_b32 {sG_}, {sT0}, 7")
        k(f"s_add_u32 {sG_}, {sG_}, {MODN + 6144}")
        k(f"s_lshl_b32 {sT0}, {sT0}, 6")
        k(f"s_lshr_b32 {sT1}, {self.sW}, 1")
        k(f"s_lshl_b32 {sT2}, {sRT}, 1")
        k(f"s_add_u32 {sT2}, {sT2}, {sT1}")
        k(f"s_lshl_b32 {sT2}, {sT2}, 15")
        k(f"s_add_u32 {sX}, {sT2}, {sT0}")
        k(f"s_add_u32 {sX}, {sX}, {X1}")
        k(f"s_add_u32 {sO}, {sX}, 32")
        for a_ in range(4):
            k(f"buffer_load_dwordx4 {gb[4 * a_:4 * a_ + 4]}, {vgb}, {self.sWS}, {sG_} offen offset:{32 * a_} sc1")
        k(f"buffer_load_dwordx4 {x1[0:4]}, {vx}, {self.sWS}, {sX} offen sc1")
        k(f"buffer_load_dwordx4 {x1[4:8]}, {vx}, {self.sWS}, {sO} offen sc1")
        k(f"s_lshl_b32 {sT1}, {sT1}, 10")
        k(f"s_add_u32 {sT1}, {sT1}, {sRT}")
        k(f"s_lshl_b32 {sT1}, {sT1}, 10")
        sOut = sB[0][3]
        k(f"s_add_u32 {sOut}, {sT1}, {sT0}")
        F = Hb[32:48]
        R = Hb[48:96]
        for T in range(4):
            a_ = acc[T % 2][T // 2]
            k(f"s_cmp_eq_u32 {self.sW}, {T}")
            k(f"s_cbranch_scc1 L_own{T}")
            k(f"s_add_u32 {sT0}, {self.sW}, {3 - T}")
            k(f"s_and_b32 {sT0}, {sT0}, 3")
            k(f"s_add_u32 {sT0}, {sT0}, {3 * T}")
            k(f"s_lshl_b32 {sT0}, {sT0}, 12")
            k(f"v_add_u32 {vred}, {sT0}, {self.vL16}")
            for i in range(4):
                k(f"ds_write_b128 {vred}, {a_[4 * i:4 * i + 4]} offset:{1024 * i}")
            k(f"s_branch L_next{T}")
            k(f"L_own{T}:")
            for r in range(0, 16, 2):
                k(f"v_pk_mov_b32 {F[r:r + 2]}, {a_[r:r + 2]}, {a_[r:r + 2]} op_sel:[0,1]")
            k(f"L_next{T}:")
        k(f"s_mul_i32 {sT0}, {self.sW}, 12288")
        k(f"v_add_u32 {vred}, {sT0}, {self.vL16}")
        k("s_waitcnt lgkmcnt(0)")
        k("s_barrier")
        for j in range(3):
            for i in range(4):
                k(f"ds_read_b128 {R[16 * j + 4 * i:16 * j + 4 * i + 4]}, {vred} offset:{4096 * j + 1024 * i}")
        k(f"s_mov_b32 {self.sSpin}, 0")
        k("L_x1_chk:")
        k("s_waitcnt vmcnt(0)")
        k(f"v_max_u32 {self.vT0}, {x1[0]}, {x1[4]}")
        k(f"v_cmp_eq_u32 vcc, -1, {self.vT0}")
        k("s_cbranch_vccz L_x1_ok")
        k(f"buffer_load_dwordx4 {x1[0:4]}, {vx}, {self.sWS}, {sX} offen sc1")
        k(f"buffer_load_dwordx4 {x1[4:8]}, {vx}, {self.sWS}, {sO} offen sc1")
        k(f"s_add_u32 {self.sSpin}, {self.sSpin}, 1")
        k(f"s_cmp_lt_u32 {self.sSpin}, {SPIN_MAX}")
        k("s_cbranch_scc1 L_x1_chk")
        self.timeout_block(7)
        k("L_x1_ok:")
        xf = Hb[96:112]
        for i in range(8):
            k(f"v_lshlrev_b32 {xf[2 * i]}, 16, {x1[i]}")
            k(f"v_and_b32 {xf[2 * i + 1]}, 0xffff0000, {x1[i]}")
        for j in range(3):
            k(f"s_waitcnt lgkmcnt({8 - 4 * j})")
            for r in range(0, 16, 2):
                k(f"v_pk_add_f32 {F[r:r + 2]}, {F[r:r + 2]}, {R[16 * j + r:16 * j + r + 2]}")
        for r in range(0, 16, 2):
            k(f"v_pk_fma_f32 {F[r:r + 2]}, {F[r:r + 2]}, {gb[r:r + 2]}, {xf[r:r + 2]}")
        Pq = Hb[112:120]
        for r in range(0, 16, 2):
            k(f"v_cvt_pk_bf16_f32 {Pq[r // 2]}, {F[r]}, {F[r + 1]}")
        for u in range(2):
            k(f"v_permlane32_swap_b32 {Pq[4 * u]}, {Pq[4 * u + 2]}")
            k(f"v_permlane32_swap_b32 {Pq[4 * u + 1]}, {Pq[4 * u + 3]}")
        for u in range(2):
            k(f"buffer_store_dwordx4 {Pq[4 * u:4 * u + 4]}, {vo}, {self.sOUT}, {sOut} offen offset:{32 * u}")
        self.stamp()

    def build(self):
        k = self.k
        self.prologue()
        self.sNL2E = self.S(2)
        k(f"s_mov_b32 {self.sNL2E[0]}, {f2h(-LOG2E)}")
        phases = [self.phase0, self.phaseA, self.phaseB, self.phaseC, self.gemm1, self.gemm2]
        for i, p in enumerate(phases):
            if i > self.stop:
                break
            p()
        self.finish()
        k("L_exit:")
        k("s_endpgm")
        txt, desc = k.emit()
        hdr = open('adaLN_cond__spectral_gfnet__dense_activation_silu__prompt.s.ref').read()
        hdr = "".join(l + "\n" for l in hdr.split("\n") if l.startswith(";") and "@launch" not in l and "Override" not in l
                      and "grid=ceil" not in l)
        hdr += f"; @launch grid=(256,1,1) block=(256,1,1) lds={LDS_SIZE}\n"
        return hdr + '.amdgcn_target "amdgcn-amd-amdhsa--gfx950"\n' + txt + desc


if __name__ == "__main__":
    out = sys.argv[1] if len(sys.argv) > 1 else "k.s"
    stop = int(sys.argv[2]) if len(sys.argv) > 2 else 99
    stamps = len(sys.argv) > 3 and sys.argv[3] == "1"
    g = Gen(stop, stamps)
    s = g.build()
    open(out, "w").write(s)
    print(f"wrote {out}: vgpr {g.k.nvgpr} nfv {g.k.nfv} sgpr {g.k.s.high} nops {g.k.nops_inserted} stamps {g.nstamp}")
```

```python
import struct
import sys

sys.path.insert(0, 'work')
from asmgen import Kernel, Reg, interleave

NAME = "adaLN_cond__spectral_gfnet__dense_activation_silu__prompt_kernel"

EPOCH = 0x0000
FLAGS = 0x0800
MODG = 0x4000
MODN = 0x8000
WT = 0x100000
Z1 = 0x400000
Y2 = 0x600000
H2 = 0x800000
X1 = 0xA00000
W2F = 0xC00000
H1 = 0x1000000
STAMP = 0x1600000
WS_SIZE = 0x1700000
OOB = 0x7F000000

L_W1 = 0
L_XS = 98304
L_R1 = L_XS + 4 * 2304
L_R2 = L_R1 + 8704
L_RED = L_R2 + 10240
L_MOD = L_RED + 1024
LDS_SIZE = L_MOD + 8192

LOG2E = 1.4426950408889634
SPIN_MAX = 1 << 17


def f2h(x):
    return "0x%08x" % struct.unpack("<I", struct.pack("<f", x))[0]


class Gen:
    def __init__(self, stop=99, stamps=False):
        self.k = Kernel(NAME, nsgpr=100, vlimit=256, alimit=256)
        self.stop = stop
        self.stamps = stamps
        self.nstamp = 0
        self.fine = False
        self.vmq = []
        self.bgq = []
        self.names = []

    def vm(self, text, tag=None, opt=False):
        self.k(text)
        self.vmq.append((tag, opt))

    def vwait(self, tag):
        idx = max(i for i, (t, o) in enumerate(self.vmq) if t == tag)
        n = sum(1 for t, o in self.vmq[idx + 1:] if not o)
        assert n <= 63
        self.k(f"s_waitcnt vmcnt({n})")
        self.vmq = self.vmq[idx + 1:]

    def vdrain(self, emit=True):
        if emit:
            self.k("s_waitcnt vmcnt(0)")
        self.vmq = []

    def bg(self, n=1):
        hook, self.k.hook = self.k.hook, None
        for _ in range(n):
            if self.bgq:
                self.emit(self.bgq.pop(0))
        self.k.hook = hook
        self.bgacc = 0

    def sprinkle(self, period):
        if period is None:
            self.k.hook = None
            return
        self.bgacc = 0

        def hook(ln):
            if not ln.startswith("v_"):
                return
            op = ln.split()[0]
            self.bgacc += 8 if op.startswith(("v_sin", "v_cos", "v_exp", "v_rcp", "v_rsq")) else 4
            if self.bgacc >= period:
                self.bg(1)
        self.k.hook = hook

    def emit(self, lst):
        for x in lst:
            if isinstance(x, tuple):
                self.vm(*x)
            elif x.startswith(("buffer_", "global_")):
                self.vm(x)
            else:
                self.k(x)

    def V(self, n=1, align=None):
        return self.k.v.get(n, align)

    def S(self, n=1, align=None):
        return self.k.s.get(n, align)

    def fv(self, *r):
        self.k.v.free(*r)

    def fs(self, *r):
        self.k.s.free(*r)

    def fstamp(self, name):
        if self.fine:
            self.stamp(name)

    def stamp(self, name="?"):
        if not self.stamps:
            return
        self.names.append(name)
        k = self.k
        r = self.S(2)
        self.sST.append((self.nstamp, r))
        k(f"s_memtime {r}")
        self.nstamp += 1

    def ang(self, dst, mul, K, base):
        k = self.k
        if K == 0:
            k(f"v_mov_b32 {dst}, {base}")
        elif K == 1:
            k(f"v_add_f32 {dst}, {mul}, {base}")
        else:
            k(f"v_fmamk_f32 {dst}, {mul}, {f2h(float(K))}, {base}")

    def cmul_pk(self, outr, outi, ar, ai, tc, ts, conj, tmp):
        k = self.k
        k(f"v_pk_mul_f32 {tmp[0:2]}, {ar}, {tc}")
        k(f"v_pk_mul_f32 {tmp[2:4]}, {ai}, {tc}")
        if conj:
            k(f"v_pk_fma_f32 {tmp[0:2]}, {ai}, {ts}, {tmp[0:2]}")
            k(f"v_pk_fma_f32 {outi}, {ar}, {ts}, {tmp[2:4]} neg_lo:[1,0,0] neg_hi:[1,0,0]")
        else:
            k(f"v_pk_fma_f32 {tmp[0:2]}, {ai}, {ts}, {tmp[0:2]} neg_lo:[1,0,0] neg_hi:[1,0,0]")
            k(f"v_pk_fma_f32 {outi}, {ar}, {ts}, {tmp[2:4]}")
        if outr is not None:
            k(f"v_pk_mov_b32 {outr}, {tmp[0:2]}, {tmp[0:2]} op_sel:[0,1]")

    def timeout_block(self, code):
        k = self.k
        t = self.vT0
        k(f"s_mov_b64 exec, 1")
        k(f"v_mov_b32 {t}, {code}")
        k(f"buffer_store_dword {t}, off, {self.sDBG}, 0 offset:{4 * code}")
        k("s_endpgm")

    def row_allsum(self, regs):
        k = self.k
        for sh in (1, 2, 4, 8):
            for r in regs:
                k(f"v_add_f32_dpp {r}, {r}, {r} row_ror:{sh} row_mask:0xf bank_mask:0xf")

    def wave_sum63(self, regs):
        k = self.k
        self.row_allsum(regs)
        for r in regs:
            k(f"v_add_f32_dpp {r}, {r}, {r} row_bcast:15 row_mask:0xa bank_mask:0xf")
        for r in regs:
            k(f"v_add_f32_dpp {r}, {r}, {r} row_bcast:31 row_mask:0xc bank_mask:0xf")

    def flush_stamps(self):
        if not self.stamps:
            return
        k = self.k
        k("s_waitcnt lgkmcnt(0)")
        for idx, r in self.sST:
            k(f"v_writelane_b32 {self.vST}, {r[0]}, {idx}")
            self.fs(r)
        self.sST = []

    def finish(self):
        k = self.k
        if self.stamps:
            r = self.S(2)
            k(f"s_memrealtime {r}")
            self.sST.append((31, r))
            self.flush_stamps()
            k(f"s_lshl_b32 {self.sT0}, s2, 10")
            k(f"s_lshl_b32 {self.sT1}, {self.sW}, 8")
            k(f"s_add_u32 {self.sT0}, {self.sT0}, {self.sT1}")
            k(f"s_add_u32 {self.sT0}, {self.sT0}, {STAMP}")
            k(f"v_lshlrev_b32 {self.vT0}, 2, {self.vL}")
            k(f"buffer_store_dword {self.vST}, {self.vT0}, {self.sWS}, {self.sT0} offen")
        k("s_endpgm")

    def prologue(self):
        k = self.k
        S, V = self.S, self.V
        names = ["sX", "sWR", "sWI", None, "sW1", "sW2", "sC", "sWM", "sOUT", "sDBG", "sWS"]
        sizes = [2097152, 2048 * 514, 2048 * 514, 0, 512 * 2752, 1376 * 1024, 1024, 512 * 6144, 2097152, 256,
                 WS_SIZE]
        first = [7, 6, 10]
        rest = [0, 1, 2, 5, 4, 8, 9]
        for i in first + rest:
            setattr(self, names[i], S(4))
        self.sPC = S(2)
        self.vCP = V()
        for i in first:
            k(f"s_load_dwordx2 {getattr(self, names[i])[0:2]}, s[0:1], {8 * i}")
        k(f"s_getpc_b64 {self.sPC}")
        k("L_pc:")
        k("s_cmp_ge_u32 s2, 16")
        k("s_cbranch_scc1 L_nopf")
        k(f"v_lshlrev_b32 {self.vCP}, 7, v0")
        k(f"v_min_u32 {self.vCP}, L_exit-L_pc, {self.vCP}")
        self.vm(f"global_load_dword {self.vCP}, {self.vCP}, {self.sPC}", opt=True)
        k("L_nopf:")
        k("s_cmp_ge_u32 s2, 256")
        k("s_cbranch_scc1 L_exit")
        if self.stamps:
            self.vST = V()
            r = S(2)
            self.sST = [(30, r)]
            k(f"s_memrealtime {r}")
        self.stamp("start")
        self.sG, self.sCB, self.sRB, self.sW, self.sXc, self.sY = S(), S(), S(), S(), S(), S()
        self.sT0, self.sT1, self.sT2, self.sT3 = S(), S(), S(), S()
        self.sSpin, self.sBG, self.sTag, self.sE = S(), S(), S(), S()
        self.vL, self.vT0, self.vL16, self.vTid16 = V(), V(), V(), V()
        sT0, sT1 = self.sT0, self.sT1
        self.vwm, self.vc2, self.vc, self.wc = V(), V(), V(), V(4, 4)
        self.sWMo = S()
        k(f"s_lshr_b32 {self.sY}, s2, 3")
        k(f"s_and_b32 {self.sXc}, s2, 7")
        k(f"s_lshr_b32 {sT0}, s2, 7")
        k(f"s_lshl3_add_u32 {sT0}, {sT0}, {self.sXc}")
        k(f"s_and_b32 {self.sCB}, {self.sY}, 3")
        k(f"s_lshl2_add_u32 {self.sCB}, {sT0}, {self.sCB}")
        k(f"s_bfe_u32 {self.sRB}, s2, 0x20005")
        k(f"s_mul_i32 {self.sWMo}, {self.sRB}, {128 * 6144}")
        k(f"s_lshl_b32 {sT0}, {self.sCB}, 5")
        k(f"s_add_u32 {sT0}, {sT0}, {self.sWMo}")
        k(f"s_lshl_b32 {sT1}, {self.sRB}, 8")
        k(f"v_and_b32 {self.vc2}, -2, v0")
        k(f"v_mul_u32_u24 {self.vwm}, 3072, {self.vc2}")
        k(f"v_and_b32 {self.vT0}, 1, v0")
        k(f"v_lshl_add_u32 {self.vwm}, {self.vT0}, 4, {self.vwm}")
        for i in first[:2]:
            r = getattr(self, names[i])
            k(f"s_mov_b32 {r[2]}, {sizes[i]}")
            k(f"s_mov_b32 {r[3]}, 0x20000")
        k("s_waitcnt lgkmcnt(0)")
        self.fstamp("kernarg")
        self.vm(f"buffer_load_dwordx4 {self.wc}, {self.vwm}, {self.sWM}, {sT0} offen", "crit")
        self.vm(f"buffer_load_ushort {self.vc}, {self.vc2}, {self.sC}, {sT1} offen", "crit")
        k(f"s_load_dword {self.sE}, {self.sWS[0:2]}, {EPOCH}")
        for i in rest:
            k(f"s_load_dwordx2 {getattr(self, names[i])[0:2]}, s[0:1], {8 * i}")
        self.stamp("crit issued")
        for i in first[2:] + rest:
            r = getattr(self, names[i])
            k(f"s_mov_b32 {r[2]}, {sizes[i]}")
            k(f"s_mov_b32 {r[3]}, 0x20000")
        k(f"v_lshrrev_b32 {self.vT0}, 6, v0")
        k(f"v_and_b32 {self.vL}, 63, v0")
        k(f"v_readfirstlane_b32 {self.sW}, {self.vT0}")
        k(f"s_lshl_b32 {self.sG}, {self.sXc}, 5")
        k(f"s_add_u32 {self.sG}, {self.sG}, {self.sY}")
        k(f"v_lshlrev_b32 {self.vL16}, 4, {self.vL}")
        k(f"v_lshlrev_b32 {self.vTid16}, 4, v0")

    def lane_reduce(self, v, n):
        k = self.k
        for sh in (2, 4, 8):
            for i in range(n):
                k(f"v_add_f32_dpp {v[i]}, {v[i]}, {v[i]} row_ror:{sh} row_mask:0xf bank_mask:0xf")
        h = n // 2
        for i in range(h):
            k(f"v_permlane16_swap_b32 {v[i]}, {v[i + h]}")
        for i in range(h):
            k(f"v_add_f32 {v[i]}, {v[i]}, {v[i + h]}")
        q = h // 2
        for i in range(q):
            k(f"v_permlane32_swap_b32 {v[i]}, {v[i + q]}")
        for i in range(q):
            k(f"v_add_f32 {v[i]}, {v[i]}, {v[i + q]}")

    def sum4_tag(self, p, vtb):
        k = self.k
        k(f"v_pk_add_f32 {p[0:2]}, {p[0:2]}, {p[4:6]}")
        k(f"v_pk_add_f32 {p[2:4]}, {p[2:4]}, {p[6:8]}")
        k(f"v_pk_add_f32 {p[8:10]}, {p[8:10]}, {p[12:14]}")
        k(f"v_pk_add_f32 {p[10:12]}, {p[10:12]}, {p[14:16]}")
        k(f"v_pk_add_f32 {p[0:2]}, {p[0:2]}, {p[8:10]}")
        k(f"v_pk_add_f32 {p[2:4]}, {p[2:4]}, {p[10:12]}")
        k(f"s_movk_i32 {self.sT0}, 0xff")
        for i in range(4):
            k(f"v_bfi_b32 {p[i]}, {self.sT0}, {vtb[i]}, {p[i]}")

    def phase0(self):
        k = self.k
        S, V = self.S, self.V
        sT0, sT1, sT2, sT3 = self.sT0, self.sT1, self.sT2, self.sT3
        vwm, vc, wc = self.vwm, self.vc, self.wc
        t = V(8, 4)
        self.vPz = V(4, 4)
        for i in range(4):
            k(f"v_mov_b32 {self.vPz[i]}, -1")
        sXrow = S()
        k(f"s_and_b32 {sT2}, {self.sG}, 7")
        k(f"s_lshl_b32 {sT2}, {sT2}, 8")
        k(f"s_lshr_b32 {sT3}, {self.sG}, 3")
        k(f"s_add_u32 {sT2}, {sT2}, {sT3}")
        k(f"s_lshl_b32 {sT3}, {self.sW}, 6")
        k(f"s_add_u32 {sT2}, {sT2}, {sT3}")
        k(f"s_lshl_b32 {sXrow}, {sT2}, 10")
        self.sXS = S()
        k(f"s_mul_i32 {self.sXS}, {self.sW}, 2304")
        k(f"s_add_u32 {self.sXS}, {self.sXS}, {L_XS}")
        k(f"s_mov_b32 m0, {self.sXS}")
        self.sZ1, self.sY2, self.sWTo = S(), S(), S()
        sWTo = self.sWTo
        k(f"s_lshl_b32 {sT2}, {self.sG}, 13")
        k(f"s_add_u32 {self.sZ1}, {sT2}, {Z1}")
        k(f"s_add_u32 {self.sY2}, {sT2}, {Y2}")
        k(f"s_mul_i32 {sWTo}, s2, {2 * 257 * 16}")
        k(f"s_add_u32 {sWTo}, {sWTo}, {WT}")

        self.pa_consts()

        self.wr, self.wi, self.sp, self.vsp = V(8, 4), V(8, 4), V(4, 4), V()
        wr, wi, sp, vsp = self.wr, self.wi, self.sp, self.vsp
        vw2, vs1, vs2, vpw = V(), V(), V(), V()
        sWb = S()
        k(f"v_lshlrev_b32 {vw2}, 1, v0")
        k(f"s_lshr_b32 {sT0}, s2, 2")
        k(f"s_and_b32 {sT1}, s2, 3")
        k(f"s_lshl_b32 {sT1}, {sT1}, 9")
        k(f"s_add_u32 {sWb}, {sT0}, {sT1}")
        k(f"v_and_b32 {vs1}, 1, {self.vL}")
        k(f"v_lshlrev_b32 {vs1}, 8, {vs1}")
        k(f"s_lshl_b32 {sT0}, {self.sW}, 6")
        k(f"s_add_u32 {sT0}, {sT0}, {sWb}")
        k(f"v_add_u32 {vs1}, {sT0}, {vs1}")
        k(f"v_sub_u32 {vs2}, 2048, {vs1}")
        k(f"v_and_b32 {vs2}, 2047, {vs2}")
        k(f"v_lshlrev_b32 {vsp}, 8, {self.vL}")
        k(f"v_and_b32 {vsp}, 512, {vsp}")
        k(f"s_movk_i32 {sT0}, 514")
        k(f"v_mad_u32_u24 {vs1}, {vs1}, {sT0}, {vsp}")
        k(f"v_mad_u32_u24 {vs2}, {vs2}, {sT0}, {vsp}")
        k(f"v_mul_u32_u24 {vpw}, 4112, {self.vL}")
        vred = V()
        self.vtb, self.vrn = V(4, 4), V()
        k(f"v_lshrrev_b32 {t[0]}, 4, {self.vL}")
        k(f"v_and_b32 {t[1]}, 1, {t[0]}")
        k(f"v_lshlrev_b32 {t[1]}, 4, {t[1]}")
        k(f"v_lshrrev_b32 {t[0]}, 1, {t[0]}")
        k(f"v_lshl_add_u32 {t[0]}, {t[0]}, 3, {t[1]}")
        k(f"v_and_b32 {t[1]}, 1, {self.vL}")
        k(f"v_lshl_add_u32 {t[0]}, {t[1]}, 5, {t[0]}")
        k(f"v_lshlrev_b32 {self.vrn}, 1, {t[0]}")
        k(f"s_lshl_b32 {sT0}, {self.sW}, 6")
        k(f"s_add_u32 {sT1}, {sT0}, {L_RED}")
        k(f"v_add_u32 {vred}, {sT1}, {t[0]}")
        k(f"s_lshl_b32 {sT0}, {sT0}, 1")
        k(f"s_add_u32 {sT0}, {sT0}, {L_RED + 256}")
        k(f"v_add_u32 {self.vrn}, {sT0}, {self.vrn}")
        vpr, vpl = V(), V()
        k(f"v_and_b32 {vpr}, 48, {self.vL16}")
        k(f"v_add_u32 {vpl}, {L_RED}, {vpr}")
        sPub = S()
        k(f"s_lshl_b32 {sT0}, {self.sRB}, 12")
        k(f"s_lshl_b32 {sPub}, {self.sCB}, 6")
        k(f"s_add_u32 {sPub}, {sPub}, {sT0}")
        k(f"s_add_u32 {sPub}, {sPub}, {MODG}")
        k("s_waitcnt lgkmcnt(0)")
        k(f"s_mul_i32 {sT0}, {self.sE}, 0x9e3779b1")
        k(f"s_add_u32 {sT0}, {sT0}, 0x7f4a7c15")
        k(f"s_andn2_b32 {sT1}, 1, {sT0}")
        k(f"s_lshl_b32 {sT1}, {sT1}, 8")
        k(f"s_andn2_b32 {sT0}, {sT0}, 0x100")
        k(f"s_or_b32 {self.sTag}, {sT0}, {sT1}")
        for i in range(4):
            k(f"v_lshrrev_b32_e64 {self.vtb[i]}, {8 * i}, {self.sTag}")

        acc = V(8, 4)
        self.s0 = V()
        s0 = self.s0
        self.vwait("crit")
        self.stamp("crit arrived")
        k(f"v_lshlrev_b32 {t[0]}, 16, {vc}")
        k(f"v_mul_f32 {t[2]}, {f2h(-LOG2E)}, {t[0]}")
        k(f"v_exp_f32 {t[2]}, {t[2]}")
        k(f"v_lshlrev_b32 {acc[0]}, 16, {wc[0]}")
        k(f"v_and_b32 {acc[1]}, 0xffff0000, {wc[0]}")
        k(f"v_add_f32 {t[2]}, 1.0, {t[2]}")
        k(f"v_rcp_f32 {t[2]}, {t[2]}")
        k(f"v_lshlrev_b32 {acc[2]}, 16, {wc[1]}")
        k(f"v_and_b32 {acc[3]}, 0xffff0000, {wc[1]}")
        k(f"v_mul_f32 {t[0]}, {t[0]}, {t[2]}")
        k(f"v_cvt_pk_bf16_f32 {t[0]}, {t[0]}, {t[0]}")
        k(f"v_lshlrev_b32 {acc[4]}, 16, {wc[2]}")
        k(f"v_and_b32 {acc[5]}, 0xffff0000, {wc[2]}")
        k(f"v_lshlrev_b32 {acc[6]}, 16, {wc[3]}")
        k(f"v_and_b32 {acc[7]}, 0xffff0000, {wc[3]}")
        k(f"v_and_b32 {s0}, 0xffff0000, {t[0]}")
        for i in range(8):
            k(f"v_mul_f32 {acc[i]}, {s0}, {acc[i]}")
        self.lane_reduce(acc, 8)
        k("s_mov_b32 exec_lo, 0x00030003")
        k("s_mov_b32 exec_hi, 0x00030003")
        k(f"ds_write_b64 {vred}, {acc[0:2]}")
        k("s_mov_b64 exec, -1")
        self.vm(f"buffer_load_dwordx4 {self.vL16}, {self.sX}, {sXrow} offen lds")
        k(f"s_add_u32 {sT2}, {self.sXS}, 1152")
        k(f"s_mov_b32 m0, {sT2}")
        k(f"s_add_u32 {sXrow}, {sXrow}, 32768")
        self.vm(f"buffer_load_dwordx4 {self.vL16}, {self.sX}, {sXrow} offen lds", "x")
        self.fs(sXrow)
        k("s_waitcnt lgkmcnt(0)")
        k("s_barrier")
        k(f"s_cmp_lg_u32 {self.sW}, 0")
        k("s_cbranch_scc1 L_nopub")
        p = V(16, 4)
        for i in range(4):
            k(f"ds_read_b128 {p[4 * i:4 * i + 4]}, {vpl} offset:{64 * i}")
        k("s_waitcnt lgkmcnt(0)")
        self.sum4_tag(p, self.vtb)
        k("s_mov_b64 exec, 15")
        self.vm(f"buffer_store_dwordx4 {p[0:4]}, {vpr}, {self.sWS}, {sPub} offen sc1", opt=True)
        k("s_mov_b64 exec, -1")
        k("L_nopub:")
        self.stamp("published")

        k(f"s_mul_i32 {sT0}, {sWb}, 514")
        for e in range(8):
            self.vm(f"buffer_load_ushort {wr[e]}, {vw2}, {self.sWR}, {sT0} offen")
            self.vm(f"buffer_load_ushort {wi[e]}, {vw2}, {self.sWI}, {sT0} offen")
            if e < 7:
                k(f"s_add_u32 {sT0}, {sT0}, {64 * 514}")
        k("s_mov_b64 exec, 15")
        self.vm(f"buffer_load_ushort {sp[0]}, {vs1}, {self.sWR}, 0 offen")
        self.vm(f"buffer_load_ushort {sp[1]}, {vs1}, {self.sWI}, 0 offen")
        self.vm(f"buffer_load_ushort {sp[2]}, {vs2}, {self.sWR}, 0 offen")
        self.vm(f"buffer_load_ushort {sp[3]}, {vs2}, {self.sWI}, 0 offen")
        k("s_mov_b64 exec, 3")
        k(f"s_add_u32 {sT3}, {sWTo}, 4096")
        self.vm(f"buffer_store_dwordx4 {self.vPz}, {vpw}, {self.sWS}, {sT3} offen sc1")
        k("s_mov_b64 exec, -1")
        for base, step in ((self.sZ1, 4096), (sWTo, 4112), (self.sY2, 4096)):
            k(f"s_add_u32 {sT3}, {base}, {step}")
            self.vm(f"buffer_store_dwordx4 {self.vPz}, {self.vTid16}, {self.sWS}, {base} offen sc1")
            self.vm(f"buffer_store_dwordx4 {self.vPz}, {self.vTid16}, {self.sWS}, {sT3} offen sc1")
        self.fstamp("batch2 iss")

        xa = V(8, 4)
        self.vN = V(16, 4)
        n = self.vN
        vtr = V()
        k(f"v_and_b32 {vtr}, 15, {self.vL}")
        k(f"v_lshlrev_b32 {vtr}, 3, {vtr}")
        k(f"v_bfe_u32 {t[0]}, {self.vL}, 4, 1")
        k(f"v_mul_u32_u24 {t[0]}, 1152, {t[0]}")
        k(f"v_lshrrev_b32 {t[1]}, 5, {self.vL}")
        k(f"v_lshlrev_b32 {t[1]}, 8, {t[1]}")
        k(f"v_add3_u32 {vtr}, {vtr}, {t[0]}, {t[1]}")
        k(f"v_add_u32 {vtr}, {self.sXS}, {vtr}")
        self.later_addrs(t)
        self.vTrB, self.vTr2 = V(), V()
        k(f"v_bfe_u32 {t[2]}, {self.vL}, 2, 2")
        k(f"v_lshrrev_b32 {t[3]}, 5, {self.vL}")
        k(f"v_lshl_add_u32 {t[2]}, {t[3]}, 2, {t[2]}")
        k(f"v_and_b32 {t[3]}, 3, {self.vL}")
        k(f"v_lshlrev_b32 {t[3]}, 3, {t[3]}")
        k(f"v_and_b32 {t[4]}, 16, {self.vL}")
        k(f"v_lshl_add_u32 {t[3]}, {t[4]}, 1, {t[3]}")
        k(f"v_mul_u32_u24 {self.vTrB}, 192, {t[2]}")
        k(f"v_add_u32 {self.vTrB}, {self.vTrB}, {t[3]}")
        k(f"v_lshl_add_u32 {self.vTr2}, {t[2]}, 7, {t[3]}")
        self.vwait("x")
        for ks in range(2):
            for e in range(2):
                k(f"ds_read_b64_tr_b16 {xa[4 * ks + 2 * e:4 * ks + 2 * e + 2]}, {vtr} offset:{(16 * ks + 4 * e) * 32}")
        k("s_waitcnt lgkmcnt(0)")
        for i in range(8):
            k(f"v_lshlrev_b32 {n[2 * i]}, 16, {xa[i]}")
            k(f"v_and_b32 {n[2 * i + 1]}, 0xffff0000, {xa[i]}")
        self.ln_norm_pa(n, t)
        self.stamp("ln1 done")
        self.fv(self.vc2, wc, vc, self.vCP, vw2, vs1, vs2, vpw, acc, vred, vpr, vpl, p, xa, vtr, t)
        self.fs(sWb, sPub, self.sC, self.sWR, self.sWI, self.sX, self.sPC)

    def late_loads(self):
        k = self.k
        S, V = self.S, self.V
        sT0, sT1, sT2 = self.sT0, self.sT1, self.sT2
        self.wn, self.vd2, self.vw1t = V(8, 4), V(), V()
        self.sWT_, self.sStg, sA, sB, sC_ = S(), S(), S(), S(), S()
        k(f"v_and_b32 {self.vd2}, 16, {self.vTid16}")
        k(f"v_add_u32 {self.vwm}, {self.vwm}, {self.vd2}")
        k(f"s_lshl_b32 {sA}, {self.sCB}, 6")
        k(f"s_add_u32 {sA}, {sA}, {self.sWMo}")
        k(f"v_lshrrev_b32 {self.vd2}, 3, {self.vL}")
        k(f"v_lshlrev_b32 {self.vd2}, 10, {self.vd2}")
        k(f"v_and_b32 {self.vw1t}, 7, {self.vL}")
        k(f"v_lshl_add_u32 {self.vd2}, {self.vw1t}, 4, {self.vd2}")
        k(f"v_lshlrev_b32 {self.vw1t}, 7, {self.vL}")
        k(f"s_lshl2_add_u32 {self.sWT_}, s2, {self.sW}")
        k(f"s_lshr_b32 {sT0}, {self.sWT_}, 3")
        k(f"s_lshl_b32 {sT0}, {sT0}, 14")
        k(f"s_and_b32 {sT1}, {self.sWT_}, 7")
        k(f"s_lshl_b32 {sT1}, {sT1}, 7")
        k(f"s_add_u32 {sB}, {sT0}, {sT1}")
        k(f"s_mul_i32 {self.sStg}, {self.sW}, 24576")
        k(f"s_mul_i32 {sC_}, {self.sWT_}, {11 * 128}")
        self.bgq += [
            [(f"buffer_load_dwordx4 {self.wn[0:4]}, {self.vwm}, {self.sWM}, {sA} offen offset:2048",)],
            [(f"buffer_load_dwordx4 {self.wn[4:8]}, {self.vwm}, {self.sWM}, {sA} offen offset:2064", "wn")],
            [f"s_mov_b32 m0, {self.sStg}", f"s_add_u32 {self.sBG}, {self.sStg}, 1024",
             (f"buffer_load_dwordx4 {self.vd2}, {self.sW2}, {sB} offen lds",)],
            [f"s_mov_b32 m0, {self.sBG}", f"s_add_u32 {sB}, {sB}, 8192",
             (f"buffer_load_dwordx4 {self.vd2}, {self.sW2}, {sB} offen lds", "w2")],
            ["s_mov_b64 exec, 0x7ff", (f"buffer_load_dword {self.vw1t}, {self.vw1t}, {self.sW1}, {sC_} offen",),
             "s_mov_b64 exec, -1"],
        ]
        self.late_s = (sA, sB, sC_)

    def w_relayout(self):
        k = self.k
        V = self.V
        wr, wi, sp, vsp, sWTo = self.wr, self.wi, self.sp, self.vsp, self.sWTo
        sT0, sT1 = self.sT0, self.sT1
        t = V(8, 4)
        for e in range(8):
            k(f"v_lshl_or_b32 {wr[e]}, {wi[e]}, 16, {wr[e]}")
        for e in range(8):
            k(f"v_min_u32 {wr[e]}, -2, {wr[e]}")
        k(f"v_cmp_eq_u32 vcc, 0, v0")
        k(f"v_mov_b32 {t[1]}, {OOB}")
        k(f"v_cndmask_b32 {t[0]}, {self.vTid16}, {t[1]}, vcc")
        k(f"s_add_u32 {sT1}, {sWTo}, {257 * 16}")
        self.vm(f"buffer_store_dwordx4 {wr[0:4]}, {t[0]}, {self.sWS}, {sWTo} offen sc1")
        self.vm(f"buffer_store_dwordx4 {wr[4:8]}, {t[0]}, {self.sWS}, {sT1} offen sc1")
        for i in range(4):
            k(f"v_lshlrev_b32 {sp[i]}, 16, {sp[i]}")
        k(f"v_add_f32 {t[2]}, {sp[0]}, {sp[2]}")
        k(f"v_sub_f32 {t[3]}, {sp[1]}, {sp[3]}")
        k(f"v_mul_f32 {t[2]}, 0x3e800000, {t[2]}")
        k(f"v_mul_f32 {t[3]}, 0x3e800000, {t[3]}")
        k(f"v_cvt_pk_bf16_f32 {t[4]}, {t[2]}, {t[3]}")
        k(f"v_cvt_pk_bf16_f32 {t[5]}, -{t[3]}, {t[2]}")
        k(f"v_cmp_lt_u32 vcc, 1, {self.vL}")
        k(f"v_cndmask_b32 {t[4]}, {t[4]}, {t[5]}, vcc")
        k(f"v_min_u32 {t[4]}, -2, {t[4]}")
        k(f"v_and_b32 {t[2]}, 1, {self.vL}")
        k(f"v_mul_u32_u24 {t[2]}, 4112, {t[2]}")
        k(f"v_lshl_add_u32 {t[2]}, {vsp}, 3, {t[2]}")
        k(f"s_lshl2_add_u32 {sT0}, {self.sW}, {sWTo}")
        k("s_mov_b64 exec, 15")
        self.vm(f"buffer_store_dword {t[4]}, {t[2]}, {self.sWS}, {sT0} offen sc1")
        k("s_mov_b64 exec, -1")
        self.fv(sp, vsp, wi)
        self.fs(sWTo)
        return [t, wr]

    def late_prep(self):
        k = self.k
        V = self.V
        sT0, sT1 = self.sT0, self.sT1
        acc, u, p = V(16, 4), V(8, 4), V(16, 4)
        wn = self.wn
        self.vwait("wn")
        for i in range(8):
            k(f"v_lshlrev_b32 {acc[2 * i]}, 16, {wn[i]}")
            k(f"v_and_b32 {acc[2 * i + 1]}, 0xffff0000, {wn[i]}")
        for i in range(16):
            k(f"v_mul_f32 {acc[i]}, {self.s0}, {acc[i]}")
        self.lane_reduce(acc, 16)
        self.sprinkle(None)
        k("s_mov_b32 exec_lo, 0x00030003")
        k("s_mov_b32 exec_hi, 0x00030003")
        k(f"ds_write_b128 {self.vrn}, {acc[0:4]}")
        k("s_mov_b64 exec, -1")
        k(f"v_add_u32 {self.vTr2}, {self.sStg}, {self.vTr2}")
        self.vwait("w2")
        for e in range(2):
            k(f"ds_read_b64_tr_b16 {u[4 * e:4 * e + 2]}, {self.vTr2} offset:{64 * e}")
            k(f"ds_read_b64_tr_b16 {u[4 * e + 2:4 * e + 4]}, {self.vTr2} offset:{64 * e + 1024}")
        k(f"s_lshl_b32 {sT0}, {self.sWT_}, 11")
        k(f"s_add_u32 {sT0}, {sT0}, {W2F}")
        k(f"s_cmp_lt_u32 {self.sWT_}, 688")
        k(f"s_cselect_b32 {sT0}, {sT0}, {OOB}")
        k("s_waitcnt lgkmcnt(0)")
        self.vm(f"buffer_store_dwordx4 {u[0:4]}, {self.vL16}, {self.sWS}, {sT0} offen sc1")
        self.vm(f"buffer_store_dwordx4 {u[4:8]}, {self.vL16}, {self.sWS}, {sT0} offen offset:1024 sc1")
        k("s_barrier")
        k(f"s_cmp_lg_u32 {self.sW}, 1")
        k("s_cbranch_scc1 L_nomodn")
        k(f"v_and_b32 {acc[0]}, 112, {self.vL16}")
        k(f"v_add_u32 {acc[1]}, {L_RED + 256}, {acc[0]}")
        for i in range(4):
            k(f"ds_read_b128 {p[4 * i:4 * i + 4]}, {acc[1]} offset:{128 * i}")
        k(f"s_lshl_b32 {sT0}, {self.sRB}, 13")
        k(f"s_lshl_b32 {sT1}, {self.sCB}, 7")
        k(f"s_add_u32 {sT1}, {sT1}, {sT0}")
        k(f"s_add_u32 {sT1}, {sT1}, {MODN}")
        k("s_waitcnt lgkmcnt(0)")
        self.sum4_tag(p, self.vtb)
        k("s_mov_b64 exec, 0xff")
        self.vm(f"buffer_store_dwordx4 {p[0:4]}, {acc[0]}, {self.sWS}, {sT1} offen sc1", opt=True)
        k("s_mov_b64 exec, -1")
        k("L_nomodn:")
        self.fs(self.sWT_, self.sStg, *self.late_s, self.sWMo, self.sWM, self.sW2, self.sCB, self.sRB)
        return [acc, u, p, wn, self.vd2, self.vw1t, self.vwm, self.s0, self.vrn, self.vtb, self.vTr2]

    def poison_late(self):
        st = f"buffer_store_dwordx4 {self.vPz}, "
        q = [[st + f"{self.vH2o}, {self.sWS}, {self.sH2o} offen sc1"],
             [f"s_add_u32 {self.sBG}, {self.sH2o}, 4096", st + f"{self.vH2o}, {self.sWS}, {self.sBG} offen sc1"],
             [st + f"{self.vL16}, {self.sWS}, {self.sX1o} offen sc1"],
             [st + f"{self.vL16}, {self.sWS}, {self.sX1o} offen offset:1024 sc1"]]
        q += [[st + f"{self.vL16}, {self.sWS}, {self.sH1o} offen offset:{1024 * i} sc1"] for i in range(4)]
        q += [[st + f"{self.vL16}, {self.sWS}, {self.sH1o2} offen offset:{1024 * i} sc1"] for i in range(2)]
        self.bgq += q

    def w1_setup(self, t):
        k = self.k
        self.vW1 = self.V(3)
        self.sW1g, self.sW1l = self.S(), self.S()
        for m in range(3):
            k(f"v_add_u32 {t[0]}, {64 * m}, {self.vL}")
            k(f"v_mul_u32_u24 {t[1]}, 683, {t[0]}")
            k(f"v_lshrrev_b32 {t[1]}, 13, {t[1]}")
            k(f"v_mul_u32_u24 {t[2]}, 12, {t[1]}")
            k(f"v_sub_u32 {t[0]}, {t[0]}, {t[2]}")
            k(f"v_mul_u32_u24 {t[1]}, 2752, {t[1]}")
            k(f"v_lshl_add_u32 {self.vW1[m]}, {t[0]}, 4, {t[1]}")
        k(f"s_mul_i32 {self.sW1g}, {self.sW}, {128 * 2752}")
        k(f"s_lshl_b32 {self.sT1}, {self.sFB}, 6")
        k(f"s_add_u32 {self.sW1g}, {self.sW1g}, {self.sT1}")
        k(f"s_mul_i32 {self.sW1l}, {self.sW}, 24576")
        self.w1n = 0

    def w1_queue(self):
        for i in range(24):
            it = [f"s_mov_b32 m0, {self.sW1l}", f"s_add_u32 {self.sW1l}, {self.sW1l}, 1024",
                  f"buffer_load_dwordx4 {self.vW1[i % 3]}, {self.sW1}, {self.sW1g} offen lds"]
            if i % 3 == 2:
                it.append(f"s_add_u32 {self.sW1g}, {self.sW1g}, {16 * 2752}")
            self.bgq.append(it)

    def tag_check(self, g, n, t, sP1, sP2, sMask, staged=True):
        k = self.k
        for i in range(n):
            if staged:
                k(f"s_waitcnt vmcnt({n - 1 - i})")
            k(f"v_perm_b32 {t[1]}, {g[4 * i + 1]}, {g[4 * i]}, {sP1}")
            k(f"v_perm_b32 {t[2]}, {g[4 * i + 3]}, {g[4 * i + 2]}, {sP2}")
            k(f"v_or_b32 {t[1]}, {t[1]}, {t[2]}")
            if i == 0:
                k(f"v_xor_b32 {t[0]}, {self.sTag}, {t[1]}")
            else:
                k(f"v_xor_b32 {t[1]}, {self.sTag}, {t[1]}")
                k(f"v_or_b32 {t[0]}, {t[0]}, {t[1]}")
            for j in range(4):
                k(f"v_and_b32 {g[4 * i + j]}, {sMask}, {g[4 * i + j]}")

    def later_addrs(self, t):
        k = self.k
        S, V = self.S, self.V
        sT0, sT1 = self.sT0, self.sT1
        self.vH2o, self.sH2o, self.sX1o, self.sH1o, self.sH1o2 = V(), S(), S(), S(), S()
        self.sFB, self.sR = S(), S()
        k(f"v_lshrrev_b32 {t[0]}, 3, {self.vL}")
        k(f"v_lshlrev_b32 {t[0]}, 9, {t[0]}")
        k(f"v_and_b32 {t[1]}, 7, {self.vL}")
        k(f"v_lshl_add_u32 {self.vH2o}, {t[1]}, 4, {t[0]}")
        k(f"s_lshr_b32 {sT0}, {self.sG}, 2")
        k(f"s_lshl_b32 {sT0}, {sT0}, 15")
        k(f"s_and_b32 {sT1}, {self.sG}, 3")
        k(f"s_lshl_b32 {sT1}, {sT1}, 7")
        k(f"s_add_u32 {sT0}, {sT0}, {sT1}")
        k(f"s_lshl_b32 {sT1}, {self.sW}, 13")
        k(f"s_add_u32 {sT0}, {sT0}, {sT1}")
        k(f"s_add_u32 {self.sH2o}, {sT0}, {H2}")
        k(f"s_lshl_b32 {sT0}, {self.sG}, 13")
        k(f"s_lshl_b32 {sT1}, {self.sW}, 11")
        k(f"s_add_u32 {sT0}, {sT0}, {sT1}")
        k(f"s_add_u32 {self.sX1o}, {sT0}, {X1}")
        k(f"s_lshr_b32 {sT0}, {self.sY}, 4")
        k(f"s_lshl_b32 {self.sR}, {self.sXc}, 1")
        k(f"s_add_u32 {self.sR}, {self.sR}, {sT0}")
        k(f"s_and_b32 {sT0}, {self.sY}, 15")
        k(f"s_mul_i32 {sT1}, {sT0}, 3")
        k(f"s_lshl_b32 {self.sFB}, {sT0}, 1")
        k(f"s_add_u32 {self.sFB}, {self.sFB}, 11")
        k(f"s_min_u32 {self.sFB}, {self.sFB}, {sT1}")
        k(f"s_lshl_b32 {sT1}, {self.sR}, 2")
        k(f"s_add_u32 {sT1}, {sT1}, {self.sW}")
        k(f"s_mul_i32 {sT1}, {sT1}, 43")
        k(f"s_add_u32 {sT1}, {sT1}, {self.sFB}")
        k(f"s_lshl_b32 {sT1}, {sT1}, 11")
        k(f"s_add_u32 {self.sH1o}, {sT1}, {H1}")
        k(f"s_add_u32 {sT1}, {self.sH1o}, 4096")
        k(f"s_cmp_lt_u32 {sT0}, 11")
        k(f"s_cselect_b32 {self.sH1o2}, {sT1}, {OOB}")

    def ln_norm_pa(self, n, t):
        k = self.k
        k(f"v_pk_add_f32 {t[0:2]}, {n[0:2]}, {n[2:4]}")
        k(f"v_pk_add_f32 {t[2:4]}, {n[4:6]}, {n[6:8]}")
        k(f"v_pk_add_f32 {t[4:6]}, {n[8:10]}, {n[10:12]}")
        k(f"v_pk_add_f32 {t[6:8]}, {n[12:14]}, {n[14:16]}")
        k(f"v_pk_add_f32 {t[0:2]}, {t[0:2]}, {t[2:4]}")
        k(f"v_pk_add_f32 {t[4:6]}, {t[4:6]}, {t[6:8]}")
        k(f"v_pk_add_f32 {t[0:2]}, {t[0:2]}, {t[4:6]}")
        k(f"v_add_f32 {t[0]}, {t[0]}, {t[1]}")
        self.row_allsum([t[0]])
        k(f"v_mov_b32 {t[1]}, {t[0]}")
        k(f"v_permlane32_swap_b32 {t[0]}, {t[1]}")
        k(f"v_add_f32 {t[0]}, {t[0]}, {t[1]}")
        k(f"v_mul_f32 {t[0]}, {f2h(-1.0 / 512)}, {t[0]}")
        for i in range(8):
            k(f"v_pk_add_f32 {n[2 * i:2 * i + 2]}, {n[2 * i:2 * i + 2]}, {t[0:2]} op_sel_hi:[1,0]")
        k(f"v_pk_mul_f32 {t[2:4]}, {n[0:2]}, {n[0:2]}")
        k(f"v_pk_mul_f32 {t[4:6]}, {n[2:4]}, {n[2:4]}")
        for i in range(2, 8, 2):
            k(f"v_pk_fma_f32 {t[2:4]}, {n[2 * i:2 * i + 2]}, {n[2 * i:2 * i + 2]}, {t[2:4]}")
            k(f"v_pk_fma_f32 {t[4:6]}, {n[2 * i + 2:2 * i + 4]}, {n[2 * i + 2:2 * i + 4]}, {t[4:6]}")
        k(f"v_pk_add_f32 {t[2:4]}, {t[2:4]}, {t[4:6]}")
        k(f"v_add_f32 {t[0]}, {t[2]}, {t[3]}")
        self.row_allsum([t[0]])
        k(f"v_mov_b32 {t[1]}, {t[0]}")
        k(f"v_permlane32_swap_b32 {t[0]}, {t[1]}")
        k(f"v_add_f32 {t[0]}, {t[0]}, {t[1]}")
        k(f"v_mov_b32 {t[1]}, {f2h(1e-5)}")
        k(f"v_fmac_f32 {t[1]}, {f2h(1.0 / 512)}, {t[0]}")
        k(f"v_rsq_f32 {t[0]}, {t[1]}")
        for i in range(8):
            k(f"v_pk_mul_f32 {n[2 * i:2 * i + 2]}, {n[2 * i:2 * i + 2]}, {t[0:2]} op_sel_hi:[1,0]")

    def pa_consts(self):
        k = self.k
        V = self.V
        self.B1c, self.B1s = V(8, 4), V(8, 4)
        self.TAc, self.TAs = V(8, 4), V(8, 4)
        self.A2 = V(8, 4)
        kf, hf, base, sg = V(), V(), V(), V()
        a = V(8, 4)
        c = V(8, 4)
        k(f"v_and_b32 {kf}, 31, {self.vL}")
        k(f"v_lshlrev_b32 {sg}, 31, {self.vL}")
        k(f"v_cvt_f32_u32 {kf}, {kf}")
        k(f"v_lshrrev_b32 {hf}, 5, {self.vL}")
        k(f"v_cvt_f32_u32 {hf}, {hf}")
        k(f"v_lshrrev_b32 {base}, 16, {sg}")
        k(f"v_or_b32 {sg}, {sg}, {base}")
        k(f"v_mul_f32 {kf}, {f2h(1.0 / 32)}, {kf}")
        k(f"v_mul_f32 {base}, {hf}, {kf}")
        k(f"v_mul_f32 {base}, 0x41000000, {base}")
        for j in range(8):
            self.ang(a[j], kf, j, base)
        for j in range(8):
            k(f"v_cos_f32 {c[j]}, {a[j]}")
            k(f"v_sin_f32 {a[j]}, {a[j]}")
        for j in range(4):
            k(f"v_cvt_pk_bf16_f32 {self.B1c[j]}, {c[2 * j]}, {c[2 * j + 1]}")
            k(f"v_cvt_pk_bf16_f32 {self.B1s[j]}, -{a[2 * j]}, -{a[2 * j + 1]}")
        for j in range(4):
            k(f"v_xor_b32 {self.B1c[4 + j]}, {sg}, {self.B1c[j]}")
            k(f"v_xor_b32 {self.B1s[4 + j]}, {sg}, {self.B1s[j]}")
        k(f"v_mul_f32 {kf}, {f2h(1.0 / 16)}, {kf}")
        k(f"v_mul_f32 {base}, {f2h(1.0 / 32)}, {base}")
        for r in range(8):
            self.ang(a[r], kf, 8 * (r // 4) + r % 4, base)
        for r in range(8):
            k(f"v_cos_f32 {self.TAc[r]}, {a[r]}")
            k(f"v_sin_f32 {self.TAs[r]}, {a[r]}")
        k(f"v_bfe_u32 {kf}, {self.vL}, 1, 4")
        k(f"v_lshlrev_b32 {sg}, 31, {kf}")
        k(f"v_cvt_f32_u32 {kf}, {kf}")
        k(f"v_lshrrev_b32 {base}, 16, {sg}")
        k(f"v_or_b32 {sg}, {sg}, {base}")
        k(f"v_mul_f32 {kf}, {f2h(1.0 / 16)}, {kf}")
        k(f"v_and_b32 {base}, 1, {self.vL}")
        k(f"v_cvt_f32_u32 {base}, {base}")
        k(f"v_mul_f32 {base}, 0x3e800000, {base}")
        k(f"v_mul_f32 {hf}, 4.0, {hf}")
        k(f"v_fmac_f32 {base}, {hf}, {kf}")
        for b in range(4):
            self.ang(a[b], kf, b, base)
        for b in range(4):
            k(f"v_cos_f32 {c[b]}, {a[b]}")
            k(f"v_sin_f32 {a[b]}, {a[b]}")
        k(f"v_cvt_pk_bf16_f32 {self.A2[0]}, {c[0]}, {c[1]}")
        k(f"v_cvt_pk_bf16_f32 {self.A2[1]}, {c[2]}, {c[3]}")
        k(f"v_cvt_pk_bf16_f32 {self.A2[2]}, {a[0]}, {a[1]}")
        k(f"v_cvt_pk_bf16_f32 {self.A2[3]}, {a[2]}, {a[3]}")
        for j in range(4):
            k(f"v_xor_b32 {self.A2[4 + j]}, {sg}, {self.A2[j]}")
        self.fv(kf, hf, base, sg, a, c)

    def poll2(self, name, d, va0, so0, va1, so1, code):
        k = self.k
        k(f"s_mov_b32 {self.sSpin}, 0")
        k(f"L_{name}_poll:")
        k(f"buffer_load_dwordx4 {d[0:4]}, {va0}, {self.sWS}, {so0} offen sc1")
        k(f"buffer_load_dwordx4 {d[4:8]}, {va1}, {self.sWS}, {so1} offen sc1")
        k("s_waitcnt vmcnt(0)")
        k(f"v_max_u32 {self.vT0}, {d[0]}, {d[4]}")
        k(f"v_cmp_eq_u32 vcc, -1, {self.vT0}")
        k("s_and_b64 exec, exec, vcc")
        k(f"s_cbranch_execz L_{name}_ok")
        k(f"s_add_u32 {self.sSpin}, {self.sSpin}, 1")
        k(f"s_cmp_lt_u32 {self.sSpin}, {SPIN_MAX}")
        k(f"s_cbranch_scc1 L_{name}_poll")
        self.timeout_block(code)
        k(f"L_{name}_ok:")
        k("s_mov_b64 exec, -1")
        self.vdrain(emit=False)

    def phaseA(self):
        k = self.k
        S, V = self.S, self.V
        sT0, sT1, sT2 = self.sT0, self.sT1, self.sT2
        g = V(16, 4)
        t = V(8, 4)
        vmw, vmr, vtw, vtr = V(), V(), V(), V()
        k(f"v_lshrrev_b32 {t[0]}, 7, v0")
        k(f"v_mul_u32_u24 {t[0]}, 2304, {t[0]}")
        k(f"v_and_b32 {t[1]}, 3, v0")
        k(f"v_mul_u32_u24 {t[1]}, 576, {t[1]}")
        k(f"v_and_b32 {t[2]}, 124, v0")
        k(f"v_add3_u32 {vmw}, {t[0]}, {t[1]}, {t[2]}")
        k(f"v_and_b32 {t[0]}, 15, {self.vL}")
        k(f"v_mul_u32_u24 {t[0]}, 144, {t[0]}")
        k(f"v_and_b32 {t[1]}, 32, {self.vL}")
        k(f"v_add_u32 {vmr}, {t[0]}, {t[1]}")
        k(f"v_and_b32 {t[0]}, 31, {self.vL}")
        k(f"v_lshl_add_u32 {t[0]}, {t[1]}, 3, {t[0]}")
        k(f"s_lshl_b32 {sT0}, {self.sW}, 5")
        k(f"v_add_lshl_u32 {vtw}, {t[0]}, {sT0}, 2")
        k(f"v_and_b32 {t[0]}, 1, {self.vL}")
        k(f"v_mul_u32_u24 {t[0]}, 1040, {t[0]}")
        k(f"v_lshrrev_b32 {t[1]}, 1, {self.vL}")
        k(f"s_lshl_b32 {sT0}, {self.sW}, 8")
        k(f"v_add3_u32 {t[0]}, {t[0]}, {t[1]}, {sT0}")
        k(f"v_lshlrev_b32 {vtr}, 2, {t[0]}")
        k(f"v_add_u32 {vtr}, {L_R2}, {vtr}")
        self.R1off(vmw)
        self.R1off(vmr)
        self.R2off(vtw)
        self.w1_setup(t)
        self.w2_setup()
        self.late_loads()
        sOne = S()
        self.sP1, self.sP2, self.sMask = S(), S(), S()
        sMG = [S() for _ in range(4)]
        for i in range(4):
            k(f"s_mov_b32 {sMG[i]}, {MODG + 4096 * i}")
        k(f"s_cmp_ge_u32 {self.sW}, 2")
        k(f"s_cselect_b32 {sOne}, 1.0, 0")
        k(f"s_mov_b32 {self.sP1}, 0x0c0c0400")
        k(f"s_mov_b32 {self.sP2}, 0x04000c0c")
        k(f"s_movk_i32 {self.sMask}, 0xff00")
        k(f"s_mov_b32 {self.sSpin}, 0")
        k("L_mod_poll:")
        for i in range(4):
            k(f"buffer_load_dwordx4 {g[4 * i:4 * i + 4]}, {self.vTid16}, {self.sWS}, {sMG[i]} offen sc1")
        self.tag_check(g, 4, t, self.sP1, self.sP2, self.sMask)
        k(f"v_cmp_ne_u32 vcc, 0, {t[0]}")
        k("s_and_b64 exec, exec, vcc")
        k("s_cbranch_execz L_mod_ok")
        k(f"s_add_u32 {self.sSpin}, {self.sSpin}, 1")
        k(f"s_cmp_lt_u32 {self.sSpin}, {SPIN_MAX}")
        k("s_cbranch_scc1 L_mod_poll")
        self.timeout_block(2)
        k("L_mod_ok:")
        k("s_mov_b64 exec, -1")
        self.vdrain(emit=False)
        self.stamp("mod arrived")
        k(f"v_pk_add_f32 {g[0:2]}, {g[0:2]}, {g[4:6]}")
        k(f"v_pk_add_f32 {g[2:4]}, {g[2:4]}, {g[6:8]}")
        k(f"v_pk_add_f32 {g[8:10]}, {g[8:10]}, {g[12:14]}")
        k(f"v_pk_add_f32 {g[10:12]}, {g[10:12]}, {g[14:16]}")
        k(f"v_pk_add_f32 {g[0:2]}, {g[0:2]}, {g[8:10]}")
        k(f"v_pk_add_f32 {g[2:4]}, {g[2:4]}, {g[10:12]}")
        self.round_add(g[0:4], sOne, t)
        for i in range(4):
            k(f"ds_write_b32 {vmw}, {g[i]} offset:{144 * i}")
        self.fs(sOne, *sMG)
        self.bg(2)
        k("s_waitcnt lgkmcnt(0)")
        k("s_barrier")
        sa, c1 = V(16, 4), V(16, 4)
        for v, dst in ((1, c1), (0, sa)):
            for q in range(4):
                off = v * 2304 + (16 * (q // 2) + 4 * (q % 2)) * 4
                k(f"ds_read_b128 {dst[4 * q:4 * q + 4]}, {vmr} offset:{off + self.R1off(vmr)}")
        k(f"s_cmp_lg_u32 {self.sW}, 3")
        k("s_cbranch_scc1 L_noflag")
        k(f"s_lshl_b32 {sT0}, s2, 2")
        k(f"v_mov_b32 {t[0]}, {self.sTag}")
        k("s_mov_b64 exec, 1")
        self.vm(f"buffer_store_dword {t[0]}, off, {self.sWS}, {sT0} offset:{FLAGS} sc1", opt=True)
        k("s_cmp_lg_u32 s2, 0")
        k("s_cbranch_scc1 L_noepoch")
        k(f"s_add_u32 {sT0}, {self.sE}, 1")
        k(f"v_mov_b32 {t[1]}, {sT0}")
        self.vm(f"buffer_store_dword {t[1]}, off, {self.sWS}, 0 offset:{EPOCH} sc1", opt=True)
        k("L_noepoch:")
        k("s_mov_b64 exec, -1")
        k("L_noflag:")
        n = self.vN
        A = V(8, 4)
        k("s_waitcnt lgkmcnt(0)")
        for i in range(8):
            k(f"v_pk_fma_f32 {n[2 * i:2 * i + 2]}, {n[2 * i:2 * i + 2]}, {c1[2 * i:2 * i + 2]}, {sa[2 * i:2 * i + 2]}")
        for i in range(8):
            k(f"v_cvt_pk_bf16_f32 {A[i]}, {n[2 * i]}, {n[2 * i + 1]}")
        Sr, Si = c1, sa
        k(f"v_mfma_f32_32x32x16_bf16 {Sr}, {A[0:4]}, {self.B1c[0:4]}, 0")
        k(f"v_mfma_f32_32x32x16_bf16 {Si}, {A[0:4]}, {self.B1s[0:4]}, 0")
        k(f"v_mfma_f32_32x32x16_bf16 {Sr}, {A[4:8]}, {self.B1c[4:8]}, {Sr}")
        k(f"v_mfma_f32_32x32x16_bf16 {Si}, {A[4:8]}, {self.B1s[4:8]}, {Si}")
        self.bg(3)
        D = [n, V(16, 4)]
        Bq = V(16, 4)
        for row in range(2):
            for tt in range(2):
                for hb in range(2):
                    r = 8 * row + 4 * tt + 2 * hb
                    w = 4 * tt + 2 * hb
                    self.cmul_pk(None, Si[r:r + 2], Sr[r:r + 2], Si[r:r + 2], self.TAc[w:w + 2], self.TAs[w:w + 2],
                                 True, t[4 * hb:4 * hb + 4])
                    k(f"v_cvt_pk_bf16_f32 {Bq[8 * row + 4 * tt + hb]}, {t[4 * hb]}, {t[4 * hb + 1]}")
                    k(f"v_cvt_pk_bf16_f32 {Bq[8 * row + 4 * tt + 2 + hb]}, {Si[r]}, {Si[r + 1]}")
        for row in range(2):
            k(f"v_mfma_f32_32x32x16_bf16 {D[row]}, {self.A2[0:4]}, {Bq[8 * row:8 * row + 4]}, 0")
        for row in range(2):
            k(f"v_mfma_f32_32x32x16_bf16 {D[row]}, {self.A2[4:8]}, {Bq[8 * row + 4:8 * row + 8]}, {D[row]}")
        k(f"v_cmp_eq_u32 vcc, 0, {self.vL}")
        for row in range(2):
            k(f"v_cndmask_b32 {D[row][1]}, {D[row][1]}, {D[row][8]}, vcc")
        for r in range(8):
            k(f"v_cvt_pk_bf16_f32 {t[r]}, {D[0][r]}, {D[1][r]}")
        for r in range(8):
            a_, b_ = r // 4, r % 4
            off = ((b_ % 2) * 1040 + (4 * a_ + b_ // 2) * 128) * 4
            k(f"ds_write_b32 {vtw}, {t[r]} offset:{off + self.R2off(vtw)}")
        k("s_waitcnt lgkmcnt(0)")
        k("s_barrier")
        for i in range(2):
            k(f"ds_read2_b32 {t[4 * i:4 * i + 2]}, {vtr} offset0:{128 * i} offset1:{128 * i + 32}")
            k(f"ds_read2_b32 {t[4 * i + 2:4 * i + 4]}, {vtr} offset0:{128 * i + 64} offset1:{128 * i + 96}")
        k(f"s_lshl_b32 {sT0}, {self.sW}, 11")
        k(f"s_add_u32 {sT0}, {sT0}, {self.sZ1}")
        k("s_waitcnt lgkmcnt(2)")
        k(f"v_min_u32 {t[0]}, -2, {t[0]}")
        self.vm(f"buffer_store_dwordx4 {t[0:4]}, {self.vL16}, {self.sWS}, {sT0} offen sc1")
        k("s_waitcnt lgkmcnt(0)")
        k(f"v_min_u32 {t[4]}, -2, {t[4]}")
        self.vm(f"buffer_store_dwordx4 {t[4:8]}, {self.vL16}, {self.sWS}, {sT0} offen offset:1024 sc1")
        self.stamp("Z1 stored")
        self.fv(g, vmw, vmr, vtw, vtr, sa, c1, A, D[1], Bq, n)
        self.fv(self.B1c, self.B1s, self.TAc, self.TAs, self.A2)
        self.fs(self.sZ1, self.sE)
        self.tPend = t

    def round_add(self, x, sAdd, t):
        k = self.k
        n = len(x)
        for rnd in range(2):
            for i in range(0, n, 2):
                k(f"v_cvt_pk_bf16_f32 {t[i // 2]}, {x[i]}, {x[i + 1]}")
            for i in range(0, n, 2):
                k(f"v_lshlrev_b32 {x[i]}, 16, {t[i // 2]}")
                k(f"v_and_b32 {x[i + 1]}, 0xffff0000, {t[i // 2]}")
            if rnd == 0:
                for i in range(n):
                    k(f"v_add_f32 {x[i]}, {sAdd}, {x[i]}")

    def R1off(self, v):
        return self._addbase(v, L_R1)

    def R2off(self, v):
        return self._addbase(v, L_R2)

    def _addbase(self, v, base):
        key = (v.base, base)
        if not hasattr(self, "_based"):
            self._based = set()
        if key not in self._based:
            self._based.add(key)
            self.k(f"v_add_u32 {v}, {base}, {v}")
        return 0

    def phaseB(self):
        k = self.k
        S, V = self.S, self.V
        sT0, sT1, sT2 = self.sT0, self.sT1, self.sT2
        Fr, Fi, Fn = V(8, 4), V(8, 4), V(8, 4)
        Gr, Gi, Gn = V(8, 4), V(8, 4), V(8, 4)
        TFc, TFs, TIc, TIs = V(8, 4), V(8, 4), V(8, 4), V(8, 4)
        nf, qf, kf, base, sg = V(), V(), V(), V(), V()
        a, c = V(8, 4), V(8, 4)
        sWf = S()
        pend = self.w_relayout()
        self.poison_late()
        self.sprinkle(72)
        k(f"v_and_b32 {nf}, 15, {self.vL}")
        k(f"v_lshlrev_b32 {sg}, 31, {self.vL}")
        k(f"v_cvt_f32_u32 {nf}, {nf}")
        k(f"v_lshrrev_b32 {qf}, 4, {self.vL}")
        k(f"v_cvt_f32_u32 {qf}, {qf}")
        k(f"s_lshl_b32 {sT0}, {self.sW}, 4")
        k(f"v_cvt_f32_u32 {kf}, {sT0}")
        k(f"v_lshrrev_b32 {base}, 16, {sg}")
        k(f"v_or_b32 {sg}, {sg}, {base}")
        k(f"v_readfirstlane_b32 {sWf}, {kf}")
        k(f"v_add_f32 {kf}, {kf}, {nf}")
        k(f"v_mul_f32 {kf}, {f2h(1.0 / 64)}, {kf}")
        k(f"v_mul_f32 {base}, {qf}, {kf}")
        k(f"v_mul_f32 {base}, 0x41000000, {base}")
        for j in range(8):
            self.ang(a[j], kf, j, base)
        for j in range(8):
            k(f"v_cos_f32 {c[j]}, {a[j]}")
            k(f"v_sin_f32 {a[j]}, {a[j]}")
        for j in range(4):
            k(f"v_cvt_pk_bf16_f32 {Fr[j]}, {c[2 * j]}, {c[2 * j + 1]}")
            k(f"v_cvt_pk_bf16_f32 {Fn[j]}, {a[2 * j]}, {a[2 * j + 1]}")
        for j in range(4):
            k(f"v_xor_b32 {Fi[j]}, 0x80008000, {Fn[j]}")
            k(f"v_xor_b32 {Fr[4 + j]}, {sg}, {Fr[j]}")
            k(f"v_xor_b32 {Fn[4 + j]}, {sg}, {Fn[j]}")
            k(f"v_xor_b32 {Fi[4 + j]}, {sg}, {Fi[j]}")
        self.fv(self.tPend, *pend)
        k(f"v_mul_f32 {kf}, {f2h(1.0 / 32)}, {kf}")
        k(f"v_mul_f32 {base}, {f2h(1.0 / 64)}, {base}")
        for r in range(8):
            self.ang(a[r], kf, 16 * (r // 4) + r % 4, base)
        for r in range(8):
            k(f"v_cos_f32 {TFc[r]}, {a[r]}")
            k(f"v_sin_f32 {TFs[r]}, {a[r]}")
        k(f"v_mul_f32 {kf}, {f2h(1.0 / 32)}, {nf}")
        k(f"v_mul_f32 {base}, {qf}, {kf}")
        k(f"v_mul_f32 {base}, 4.0, {base}")
        for j in range(4):
            self.ang(a[j], kf, j, base)
        for j in range(4):
            k(f"v_cos_f32 {c[j]}, {a[j]}")
            k(f"v_sin_f32 {a[j]}, {a[j]}")
        for j in range(2):
            k(f"v_cvt_pk_bf16_f32 {Gr[j]}, {c[2 * j]}, {c[2 * j + 1]}")
            k(f"v_cvt_pk_bf16_f32 {Gn[j]}, {a[2 * j]}, {a[2 * j + 1]}")
        for j in range(2):
            k(f"v_xor_b32 {Gr[2 + j]}, {sg}, {Gr[j]}")
            k(f"v_xor_b32 {Gn[2 + j]}, {sg}, {Gn[j]}")
        for j in range(4):
            k(f"v_xor_b32 {Gi[j]}, 0x80008000, {Gn[j]}")
            k(f"v_xor_b32 {Gr[4 + j]}, 0x80000000, {Gr[j]}")
            k(f"v_xor_b32 {Gn[4 + j]}, 0x80000000, {Gn[j]}")
            k(f"v_xor_b32 {Gi[4 + j]}, 0x00008000, {Gn[j]}")
        k(f"v_mul_f32 {qf}, 4.0, {qf}")
        k(f"v_add_f32 {qf}, {sWf}, {qf}")
        for tile in range(2):
            if tile == 0:
                k(f"v_mul_f32 {kf}, {f2h(1.0 / 2048)}, {nf}")
            else:
                k(f"v_add_f32 {kf}, {f2h(16.0 / 2048)}, {kf}")
            k(f"v_mul_f32 {base}, {qf}, {kf}")
            for i in range(4):
                self.ang(a[4 * tile + i], kf, i, base)
        for r in range(8):
            k(f"v_cos_f32 {TIc[r]}, {a[r]}")
            k(f"v_sin_f32 {TIs[r]}, {a[r]}")
        k(f"s_mov_b32 {sT0}, {f2h(2.0 ** -19)}")
        for r in range(8):
            k(f"v_mul_f32 {TIc[r]}, {sT0}, {TIc[r]}")
            k(f"v_mul_f32 {TIs[r]}, {sT0}, {TIs[r]}")
        vg, vw, vrd, vwt, vxw, vxr, vy = V(), V(), V(), V(), V(), V(), V()
        k(f"v_bfe_u32 {a[0]}, {self.vL}, 1, 4")
        k(f"v_lshlrev_b32 {a[0]}, 16, {a[0]}")
        k(f"v_lshrrev_b32 {a[1]}, 5, {self.vL}")
        k(f"v_lshlrev_b32 {a[1]}, 13, {a[1]}")
        k(f"v_and_b32 {a[2]}, 1, {self.vL}")
        k(f"v_lshlrev_b32 {a[3]}, 4, {a[2]}")
        k(f"v_add3_u32 {vg}, {a[0]}, {a[1]}, {a[3]}")
        sZa, sZb = S(), S()
        k(f"s_lshr_b32 {sT0}, {self.sW}, 1")
        k(f"s_lshl_b32 {sT0}, {sT0}, 20")
        k(f"s_and_b32 {sT1}, {self.sW}, 1")
        k(f"s_lshl_b32 {sT1}, {sT1}, 15")
        k(f"s_add_u32 {sT0}, {sT0}, {sT1}")
        k(f"s_lshl_b32 {sT1}, {self.sG}, 5")
        k(f"s_add_u32 {sT0}, {sT0}, {sT1}")
        k(f"s_add_u32 {sZa}, {sT0}, {Z1}")
        k(f"s_add_u32 {sZb}, {sZa}, 16384")
        k(f"v_mul_u32_u24 {a[2]}, 1088, {a[2]}")
        k(f"v_lshrrev_b32 {a[0]}, 1, {self.vL}")
        k(f"v_lshl_add_u32 {a[0]}, {a[0]}, 4, {a[2]}")
        k(f"s_mul_i32 {sT0}, {self.sW}, 2176")
        k(f"s_add_u32 {sT0}, {sT0}, {L_R1}")
        k(f"v_add_u32 {vw}, {sT0}, {a[0]}")
        k(f"v_add_u32 {vrd}, {L_R1}, {self.vL16}")
        k(f"v_and_b32 {a[0]}, 15, {self.vL}")
        k(f"v_lshrrev_b32 {a[1]}, 4, {self.vL}")
        k(f"v_lshl_add_u32 {a[2]}, {a[0]}, 3, {a[1]}")
        k(f"v_mul_u32_u24 {vwt}, 4112, {a[2]}")
        sWa, sWb = S(), S()
        k(f"s_mul_i32 {sT0}, {self.sW}, {128 * 4112}")
        k(f"s_lshl_b32 {sT1}, {self.sG}, 4")
        k(f"s_add_u32 {sT0}, {sT0}, {sT1}")
        k(f"s_add_u32 {sWa}, {sT0}, {WT}")
        k(f"s_add_u32 {sWb}, {sWa}, {4 * 4112}")
        k(f"v_mul_u32_u24 {a[0]}, 160, {a[0]}")
        k(f"v_lshl_add_u32 {vxr}, {a[1]}, 4, {a[0]}")
        k(f"v_add_u32 {vxr}, {L_R2}, {vxr}")
        k(f"v_lshl_add_u32 {vxw}, {a[1]}, 3, {a[0]}")
        k(f"s_lshl_b32 {sT0}, {self.sW}, 5")
        k(f"s_add_u32 {sT0}, {sT0}, {L_R2}")
        k(f"v_add_u32 {vxw}, {sT0}, {vxw}")
        k(f"v_and_b32 {a[0]}, 15, {self.vL}")
        k(f"v_lshlrev_b32 {a[0]}, 8, {a[0]}")
        k(f"v_lshl_add_u32 {vy}, {a[1]}, 4, {a[0]}")
        self.fv(nf, qf, kf, base, sg)
        self.fstamp("PB consts")
        vfl = V()
        k(f"v_lshlrev_b32 {vfl}, 2, v0")
        pend = self.late_prep()
        self.bg(20)
        self.fv(self.vPz)
        k(f"s_mov_b32 {self.sSpin}, 0")
        k("L_fl_poll:")
        k(f"buffer_load_dword {self.vT0}, {vfl}, {self.sWS}, 0 offen offset:{FLAGS} sc1")
        k("s_waitcnt vmcnt(0)")
        k(f"v_cmp_ne_u32 vcc, {self.sTag}, {self.vT0}")
        k("s_cbranch_vccz L_fl_ok")
        k(f"s_add_u32 {self.sSpin}, {self.sSpin}, 1")
        k(f"s_cmp_lt_u32 {self.sSpin}, {SPIN_MAX}")
        k("s_cbranch_scc1 L_fl_poll")
        self.timeout_block(1)
        k("L_fl_ok:")
        k("s_barrier")
        self.vdrain(emit=False)
        self.fv(vfl, *pend)
        self.stamp("PB window done")
        Wp, Wq = V(16, 4), None
        sWc, sWd = S(), S()
        k(f"s_add_u32 {sWc}, {sWa}, 4096")
        k(f"s_add_u32 {sWd}, {sWb}, 4096")
        k(f"s_cmp_eq_u32 {self.sG}, 0")
        k(f"s_cselect_b32 {sWc}, {sWc}, {OOB}")
        k(f"s_cselect_b32 {sWd}, {sWd}, {OOB}")
        d = V(8, 4)
        k(f"s_mov_b32 {self.sSpin}, 0")
        k("L_z1_poll:")
        for i, so in enumerate((sWa, sWb, sWc, sWd)):
            k(f"buffer_load_dwordx4 {Wp[4 * i:4 * i + 4]}, {vwt}, {self.sWS}, {so} offen sc1")
        k(f"buffer_load_dwordx4 {d[0:4]}, {vg}, {self.sWS}, {sZa} offen sc1")
        k(f"buffer_load_dwordx4 {d[4:8]}, {vg}, {self.sWS}, {sZb} offen sc1")
        k("s_waitcnt vmcnt(2)")
        k(f"v_max3_u32 {self.vT0}, {Wp[0]}, {Wp[1]}, {Wp[2]}")
        for i in range(3, 15, 2):
            k(f"v_max3_u32 {self.vT0}, {self.vT0}, {Wp[i]}, {Wp[i + 1]}")
        k(f"v_max_u32 {self.vT0}, {self.vT0}, {Wp[15]}")
        k("s_waitcnt vmcnt(0)")
        k(f"v_max3_u32 {self.vT0}, {self.vT0}, {d[0]}, {d[4]}")
        k(f"v_cmp_eq_u32 vcc, -1, {self.vT0}")
        k("s_and_b64 exec, exec, vcc")
        k("s_cbranch_execz L_z1_ok")
        k(f"s_add_u32 {self.sSpin}, {self.sSpin}, 1")
        k(f"s_cmp_lt_u32 {self.sSpin}, {SPIN_MAX}")
        k("s_cbranch_scc1 L_z1_poll")
        self.timeout_block(3)
        k("L_z1_ok:")
        k("s_mov_b64 exec, -1")
        self.vdrain(emit=False)
        self.fs(sWc, sWd)
        Wq = Wp[8:16]
        Wall = Wp
        Wp = Wall[0:8]
        self.stamp("Z1 arrived")
        k(f"ds_write_b128 {vw}, {d[0:4]}")
        k(f"ds_write_b128 {vw}, {d[4:8]} offset:512")
        self.w1_queue()
        self.bg(3)
        k("s_waitcnt lgkmcnt(0)")
        k("s_barrier")
        zr, zi = V(16, 4), V(16, 4)
        T1r, T1i = V(8, 4), V(8, 4)
        Or, Oi = V(8, 4), V(8, 4)
        Bq = V(8, 4)
        sJob = S()
        k(f"s_mov_b32 {sJob}, 0")
        for r in range(0, 8, 2):
            k(f"v_pk_mov_b32 {Or[r:r + 2]}, 0, 0")
            k(f"v_pk_mov_b32 {Oi[r:r + 2]}, 0, 0")
        for tk in range(4):
            k(f"ds_read_b128 {zr[4 * tk:4 * tk + 4]}, {vrd} offset:{tk * 2176}")
        for tk in range(4):
            k(f"ds_read_b128 {zi[4 * tk:4 * tk + 4]}, {vrd} offset:{tk * 2176 + 1088}")
        self.bg(2)
        k("L_job:")
        M = "v_mfma_f32_16x16x32_bf16"
        for tile in range(2):
            for ks in range(2):
                tk = 2 * tile + ks
                k(f"s_waitcnt lgkmcnt({7 - tk})")
                cr = "0" if ks == 0 else f"{T1r[4 * tile:4 * tile + 4]}"
                ci = "0" if ks == 0 else f"{T1i[4 * tile:4 * tile + 4]}"
                k(f"{M} {T1r[4 * tile:4 * tile + 4]}, {zr[4 * tk:4 * tk + 4]}, {Fr[4 * ks:4 * ks + 4]}, {cr}")
                k(f"{M} {T1i[4 * tile:4 * tile + 4]}, {zr[4 * tk:4 * tk + 4]}, {Fi[4 * ks:4 * ks + 4]}, {ci}")
        k(f"s_cmp_eq_u32 {self.sG}, 0")
        k("s_cbranch_scc1 L_noim")
        for tile in range(2):
            for ks in range(2):
                tk = 2 * tile + ks
                k(f"s_waitcnt lgkmcnt({3 - tk})")
                k(f"{M} {T1r[4 * tile:4 * tile + 4]}, {zi[4 * tk:4 * tk + 4]}, {Fn[4 * ks:4 * ks + 4]}, {T1r[4 * tile:4 * tile + 4]}")
                k(f"{M} {T1i[4 * tile:4 * tile + 4]}, {zi[4 * tk:4 * tk + 4]}, {Fr[4 * ks:4 * ks + 4]}, {T1i[4 * tile:4 * tile + 4]}")
        k("L_noim:")
        Wr, Wi = a, c
        for r in range(8):
            k(f"v_lshlrev_b32 {Wr[r]}, 16, {Wp[r]}")
            k(f"v_and_b32 {Wi[r]}, 0xffff0000, {Wp[r]}")
        tmp = d
        for r in range(0, 8, 2):
            tt = tmp[4 * ((r // 2) % 2):4 * ((r // 2) % 2) + 4]
            self.cmul_pk(None, T1i[r:r + 2], T1r[r:r + 2], T1i[r:r + 2], TFc[r:r + 2], TFs[r:r + 2], True, tt)
            k(f"v_cvt_pk_bf16_f32 {Bq[r // 2]}, {tt[0]}, {tt[1]}")
            k(f"v_cvt_pk_bf16_f32 {Bq[4 + r // 2]}, {T1i[r]}, {T1i[r + 1]}")
        for t2 in range(2):
            k(f"{M} {T1r[4 * t2:4 * t2 + 4]}, {Gr[4 * t2:4 * t2 + 4]}, {Bq[0:4]}, 0")
            k(f"{M} {T1i[4 * t2:4 * t2 + 4]}, {Gi[4 * t2:4 * t2 + 4]}, {Bq[0:4]}, 0")
        for t2 in range(2):
            k(f"{M} {T1r[4 * t2:4 * t2 + 4]}, {Gn[4 * t2:4 * t2 + 4]}, {Bq[4:8]}, {T1r[4 * t2:4 * t2 + 4]}")
            k(f"{M} {T1i[4 * t2:4 * t2 + 4]}, {Gr[4 * t2:4 * t2 + 4]}, {Bq[4:8]}, {T1i[4 * t2:4 * t2 + 4]}")
        for r in range(0, 8, 2):
            k(f"v_pk_fma_f32 {Or[r:r + 2]}, {T1r[r:r + 2]}, {Wr[r:r + 2]}, {Or[r:r + 2]}")
            k(f"v_pk_fma_f32 {Oi[r:r + 2]}, {T1r[r:r + 2]}, {Wi[r:r + 2]}, {Oi[r:r + 2]}")
            k(f"v_pk_fma_f32 {Or[r:r + 2]}, {T1i[r:r + 2]}, {Wi[r:r + 2]}, {Or[r:r + 2]} neg_lo:[1,0,0] neg_hi:[1,0,0]")
            k(f"v_pk_fma_f32 {Oi[r:r + 2]}, {T1i[r:r + 2]}, {Wr[r:r + 2]}, {Oi[r:r + 2]}")
        k(f"s_or_b32 {sT0}, {self.sG}, {sJob}")
        k(f"s_cmp_lg_u32 {sT0}, 0")
        k("s_cbranch_scc1 L_jobdone")
        k(f"s_mov_b32 {sJob}, 1")
        k("s_waitcnt lgkmcnt(0)")
        for r in range(0, 16, 2):
            k(f"v_pk_mov_b32 {zr[r:r + 2]}, {zi[r:r + 2]}, {zi[r:r + 2]} op_sel:[0,1]")
        for r in range(0, 8, 2):
            k(f"v_pk_mov_b32 {Wp[r:r + 2]}, {Wq[r:r + 2]}, {Wq[r:r + 2]} op_sel:[0,1]")
        k("s_branch L_job")
        k("L_jobdone:")
        for r in range(0, 8, 2):
            k(f"v_cvt_pk_bf16_f32 {Bq[r // 2]}, {Or[r]}, {Or[r + 1]}")
            k(f"v_cvt_pk_bf16_f32 {Bq[4 + r // 2]}, {Oi[r]}, {Oi[r + 1]}")
        for ts in range(2):
            k(f"{M} {T1r[4 * ts:4 * ts + 4]}, {Bq[0:4]}, {Gr[4 * ts:4 * ts + 4]}, 0")
            k(f"{M} {T1i[4 * ts:4 * ts + 4]}, {Bq[0:4]}, {Gn[4 * ts:4 * ts + 4]}, 0")
        for ts in range(2):
            k(f"{M} {T1r[4 * ts:4 * ts + 4]}, {Bq[4:8]}, {Gi[4 * ts:4 * ts + 4]}, {T1r[4 * ts:4 * ts + 4]}")
            k(f"{M} {T1i[4 * ts:4 * ts + 4]}, {Bq[4:8]}, {Gr[4 * ts:4 * ts + 4]}, {T1i[4 * ts:4 * ts + 4]}")
        self.bg(3)
        for r in range(0, 8, 2):
            tt = tmp[4 * ((r // 2) % 2):4 * ((r // 2) % 2) + 4]
            self.cmul_pk(None, T1i[r:r + 2], T1r[r:r + 2], T1i[r:r + 2], TIc[r:r + 2], TIs[r:r + 2], False, tt)
            k(f"v_cvt_pk_bf16_f32 {Or[r // 2]}, {tt[0]}, {tt[1]}")
            k(f"v_cvt_pk_bf16_f32 {Or[4 + r // 2]}, {T1i[r]}, {T1i[r + 1]}")
        for cc in range(2):
            for ts in range(2):
                k(f"ds_write_b64 {vxw}, {Or[4 * cc + 2 * ts:4 * cc + 2 * ts + 2]} offset:{cc * 5120 + ts * 2560}")
        self.bg(2)
        k("s_waitcnt lgkmcnt(0)")
        k("s_barrier")
        for tk in range(4):
            ts, ks = tk // 2, tk % 2
            k(f"ds_read_b128 {zr[4 * tk:4 * tk + 4]}, {vxr} offset:{ts * 2560 + 64 * ks}")
            k(f"ds_read_b128 {zi[4 * tk:4 * tk + 4]}, {vxr} offset:{5120 + ts * 2560 + 64 * ks}")
        self.bg(2)
        for tk in range(4):
            ts, ks = tk // 2, tk % 2
            cr = "0" if ks == 0 else f"{T1r[4 * ts:4 * ts + 4]}"
            ci = "0" if ks == 0 else f"{T1i[4 * ts:4 * ts + 4]}"
            k(f"s_waitcnt lgkmcnt({7 - 2 * tk})")
            k(f"{M} {T1r[4 * ts:4 * ts + 4]}, {Fr[4 * ks:4 * ks + 4]}, {zr[4 * tk:4 * tk + 4]}, {cr}")
            k(f"{M} {T1i[4 * ts:4 * ts + 4]}, {Fn[4 * ks:4 * ks + 4]}, {zr[4 * tk:4 * tk + 4]}, {ci}")
            k(f"s_waitcnt lgkmcnt({6 - 2 * tk})")
            k(f"{M} {T1r[4 * ts:4 * ts + 4]}, {Fi[4 * ks:4 * ks + 4]}, {zi[4 * tk:4 * tk + 4]}, {T1r[4 * ts:4 * ts + 4]}")
            k(f"{M} {T1i[4 * ts:4 * ts + 4]}, {Fr[4 * ks:4 * ks + 4]}, {zi[4 * tk:4 * tk + 4]}, {T1i[4 * ts:4 * ts + 4]}")
        k(f"s_lshl_b32 {sT0}, {self.sW}, 6")
        k(f"s_add_u32 {sT0}, {sT0}, {self.sY2}")
        k(f"s_add_u32 {sT1}, {sT0}, 4096")
        for ts in range(2):
            for i in range(4):
                k(f"v_cvt_pk_bf16_f32 {d[4 * ts + i]}, {T1r[4 * ts + i]}, {T1i[4 * ts + i]}")
            k(f"v_min_u32 {d[4 * ts]}, -2, {d[4 * ts]}")
            self.vm(f"buffer_store_dwordx4 {d[4 * ts:4 * ts + 4]}, {vy}, {self.sWS}, {sT0 if ts == 0 else sT1} offen sc1")
        self.stamp("Y2 stored")
        self.fv(Fr, Fi, Fn, Gr, Gi, Gn, TFc, TFs, TIc, TIs, a, c, vg, vw, vrd, vwt, vxw, vxr, vy, Wall, zr, zi,
                T1r, T1i, Or, Oi, Bq)
        self.fs(sWf, sZa, sZb, sWa, sWb, sJob)
        self.tPend = d

    def w2_setup(self):
        k = self.k
        S = self.S
        self.aW2 = self.k.a.get(176, 4)
        self.sK0, self.sKn, self.sKr, self.sKi, self.sW2b = S(), S(), S(), S(), S()
        sT0, sT1 = self.sT0, self.sT1
        k(f"s_mul_i32 {sT0}, {self.sW}, 22")
        k(f"s_mul_i32 {sT1}, {self.sW}, 21")
        k(f"s_add_u32 {sT1}, {sT1}, 2")
        k(f"s_min_u32 {self.sK0}, {sT0}, {sT1}")
        k(f"s_cmp_ge_u32 {self.sW}, 2")
        k(f"s_cselect_b32 {self.sKn}, 21, 22")
        k(f"s_and_b32 {sT1}, {self.sY}, 7")
        k(f"s_mul_i32 {self.sKr}, {sT1}, 21")
        k(f"s_lshr_b32 {self.sKr}, {self.sKr}, 3")
        k(f"s_mov_b32 {self.sKi}, {self.sKr}")
        k(f"s_lshl_b32 {sT0}, {self.sK0}, 14")
        k(f"s_lshl_b32 {sT1}, {sT1}, 11")
        k(f"s_add_u32 {sT0}, {sT0}, {sT1}")
        k(f"s_add_u32 {sT0}, {sT0}, {W2F}")
        self.sMBx = S()
        k(f"s_and_b32 {sT1}, {self.sW}, 1")
        k(f"s_lshl_b32 {sT1}, {sT1}, 10")
        k(f"s_add_u32 {self.sW2b}, {sT0}, {sT1}")
        k(f"s_xor_b32 {self.sMBx}, {self.sW2b}, 1024")
        self.w2n = 0

    def w2_slot(self):
        s = self.w2n
        self.w2n += 1
        t = self.sBG
        mbx = self.sMBx
        ld = [f"buffer_load_dwordx4 {self.aW2[8 * s + 4 * mb:8 * s + 4 * mb + 4]}, {self.vL16}, {self.sWS}, {t} "
              f"offen sc1" for mb in range(2)]
        return [[f"s_lshl_b32 {t}, {self.sKi}, 14", f"s_add_u32 {t}, {t}, {self.sW2b}", ld[0]],
                [f"s_lshl_b32 {t}, {self.sKi}, 14", f"s_add_u32 {t}, {t}, {mbx}", ld[1], f"s_add_u32 {self.sKi}, {self.sKi}, 1", f"s_cmp_eq_u32 {self.sKi}, {self.sKn}",
                 f"s_cselect_b32 {self.sKi}, 0, {self.sKi}"]]

    def w2_queue(self):
        while self.w2n < 22:
            self.bgq += self.w2_slot()

    def phaseC(self):
        k = self.k
        S, V = self.S, self.V
        sT0, sT1, sT2 = self.sT0, self.sT1, self.sT2
        BAr, BAi = V(8, 4), V(8, 4)
        TCc, TCs = V(16, 4), V(16, 4)
        BB = V(16, 4)
        ga, cb, sb = V(8, 4), V(8, 4), V(8, 4)
        xf = V(16, 4)
        kf, hf, base, sg, m0_, m1_ = V(), V(), V(), V(), V(), V()
        a, c = V(16, 4), V(8, 4)
        vsign = V()
        vm = V()
        mn = V(32, 4)
        vmn = V()
        sMN = [S() for _ in range(4)]
        k(f"v_lshlrev_b32 {vmn}, 1, {self.vTid16}")
        for rb in range(4):
            k(f"s_mov_b32 {sMN[rb]}, {MODN + 8192 * rb}")
        mnld = [f"buffer_load_dwordx4 {mn[8 * rb + 4 * e:8 * rb + 4 * e + 4]}, {vmn}, {self.sWS}, {sMN[rb]} "
                f"offen offset:{16 * e} sc1" for rb in range(4) for e in range(2)]
        self.bgq = [[(x, "mn")] for x in mnld] + self.bgq
        self.sprinkle(64)
        k(f"v_and_b32 {a[0]}, 31, {self.vL}")
        k(f"v_lshlrev_b32 {vm}, 6, {a[0]}")
        k(f"v_lshrrev_b32 {a[1]}, 1, {self.vL}")
        k(f"v_and_b32 {a[1]}, 16, {a[1]}")
        k(f"v_add_u32 {vm}, {vm}, {a[1]}")
        vml = V()
        k(f"v_add_u32 {vml}, {L_MOD}, {vm}")
        k(f"v_lshrrev_b32 {vm}, 1, {vm}")
        k(f"v_add_u32 {vm}, {self.sXS}, {vm}")
        for row in range(2):
            for ap in range(2):
                k(f"ds_read_b64 {c[4 * row + 2 * ap:4 * row + 2 * ap + 2]}, {vm} offset:{row * 1152 + 16 * ap}")
        k(f"v_and_b32 {kf}, 15, {self.vL}")
        k(f"v_cvt_f32_u32 {kf}, {kf}")
        k(f"v_lshrrev_b32 {hf}, 5, {self.vL}")
        k(f"v_cvt_f32_u32 {hf}, {hf}")
        k(f"v_bfe_i32 {m1_}, {self.vL}, 4, 1")
        k(f"v_not_b32 {m0_}, {m1_}")
        k(f"v_lshlrev_b32 {sg}, 31, {self.vL}")
        k(f"v_or_b32 {vsign}, 1.0, {sg}")
        k(f"v_cmp_gt_u32 vcc, 32, {self.vL}")
        k(f"v_cndmask_b32 {vsign}, 0, {vsign}, vcc")
        k(f"v_lshrrev_b32 {base}, 16, {sg}")
        k(f"v_or_b32 {sg}, {sg}, {base}")
        k("s_waitcnt lgkmcnt(0)")
        for i in range(8):
            k(f"v_lshlrev_b32 {xf[2 * i]}, 16, {c[i]}")
            k(f"v_and_b32 {xf[2 * i + 1]}, 0xffff0000, {c[i]}")
        self.fv(self.tPend)
        k(f"v_mul_f32 {kf}, {f2h(1.0 / 16)}, {kf}")
        k(f"v_mul_f32 {base}, {hf}, {kf}")
        k(f"v_add_f32 {base}, {base}, {base}")
        for q in range(4):
            self.ang(a[q], kf, 4 * (q // 2) + q % 2, base)
        for q in range(4):
            k(f"v_cos_f32 {c[q]}, {a[q]}")
            k(f"v_sin_f32 {a[q]}, {a[q]}")
        for q in range(4):
            k(f"v_cvt_pk_bf16_f32 {c[4]}, {c[q]}, -{a[q]}")
            k(f"v_cvt_pk_bf16_f32 {c[5]}, {a[q]}, {c[q]}")
            k(f"v_and_b32 {BAr[2 * q]}, {m0_}, {c[4]}")
            k(f"v_and_b32 {BAr[2 * q + 1]}, {m1_}, {c[4]}")
            k(f"v_and_b32 {BAi[2 * q]}, {m0_}, {c[5]}")
            k(f"v_and_b32 {BAi[2 * q + 1]}, {m1_}, {c[5]}")
        k(f"v_mul_f32 {kf}, {f2h(1.0 / 32)}, {kf}")
        k(f"v_mul_f32 {base}, {f2h(1.0 / 16)}, {base}")
        for r in range(16):
            self.ang(a[r], kf, 8 * (r // 4) + r % 4, base)
        for r in range(16):
            k(f"v_cos_f32 {TCc[r]}, {a[r]}")
            k(f"v_sin_f32 {TCs[r]}, {a[r]}")
        k(f"v_and_b32 {kf}, 31, {self.vL}")
        k(f"v_cvt_f32_u32 {kf}, {kf}")
        k(f"v_mul_f32 {kf}, {f2h(1.0 / 32)}, {kf}")
        k(f"v_mul_f32 {base}, {hf}, {kf}")
        k(f"v_mul_f32 {base}, 4.0, {base}")
        for r in range(8):
            self.ang(a[r], kf, 8 * (r // 4) + r % 4, base)
        for r in range(8):
            k(f"v_cos_f32 {c[r]}, {a[r]}")
            k(f"v_sin_f32 {a[r]}, {a[r]}")
        for tt in range(2):
            for j in range(2):
                k(f"v_cvt_pk_bf16_f32 {BB[4 * tt + j]}, {c[4 * tt + 2 * j]}, {c[4 * tt + 2 * j + 1]}")
                k(f"v_cvt_pk_bf16_f32 {BB[4 * tt + 2 + j]}, -{a[4 * tt + 2 * j]}, -{a[4 * tt + 2 * j + 1]}")
        for j in range(8):
            k(f"v_xor_b32 {BB[8 + j]}, {sg}, {BB[j]}")
        vg, vw, vrd, vny, vx1, vhw0, vhw1, vhr0, vhr1 = (V() for _ in range(9))
        sYa, sYb = S(), S()
        k(f"v_lshrrev_b32 {a[0]}, 1, {self.vL}")
        k(f"v_and_b32 {a[1]}, 1, {self.vL}")
        k(f"v_lshlrev_b32 {a[2]}, 13, {a[0]}")
        k(f"v_lshl_add_u32 {vg}, {a[1]}, 4, {a[2]}")
        k(f"s_lshl_b32 {sT0}, {self.sW}, 19")
        k(f"s_lshl_b32 {sT1}, {self.sG}, 5")
        k(f"s_add_u32 {sT0}, {sT0}, {sT1}")
        k(f"s_add_u32 {sYa}, {sT0}, {Y2}")
        k(f"s_add_u32 {sYb}, {sYa}, {32 * 8192}")
        k(f"v_mul_u32_u24 {a[1]}, 4160, {a[1]}")
        k(f"v_lshl_add_u32 {a[1]}, {a[0]}, 4, {a[1]}")
        k(f"s_lshl_b32 {sT0}, {self.sW}, 10")
        k(f"s_add_u32 {sT0}, {sT0}, {L_R1}")
        k(f"v_add_u32 {vw}, {sT0}, {a[1]}")
        k(f"s_lshr_b32 {sT0}, {self.sW}, 1")
        k(f"s_mul_i32 {sT0}, {sT0}, 4160")
        k(f"s_and_b32 {sT1}, {self.sW}, 1")
        k(f"s_lshl_b32 {sT1}, {sT1}, 3")
        k(f"s_add_u32 {sT0}, {sT0}, {sT1}")
        k(f"s_add_u32 {sT0}, {sT0}, {L_R1}")
        k(f"v_and_b32 {a[0]}, 31, {self.vL}")
        k(f"v_lshrrev_b32 {a[1]}, 5, {self.vL}")
        k(f"v_lshlrev_b32 {a[2]}, 10, {a[1]}")
        k(f"v_lshl_add_u32 {a[2]}, {a[0]}, 4, {a[2]}")
        k(f"v_add_u32 {vrd}, {sT0}, {a[2]}")
        k(f"v_and_b32 {a[2]}, 4, {m1_}")
        k(f"v_add_u32 {vny}, {sT0}, {a[2]}")
        k(f"v_lshl_add_u32 {a[2]}, {a[0]}, 1, {a[1]}")
        k(f"v_lshlrev_b32 {vx1}, 4, {a[2]}")
        k(f"v_lshlrev_b32 {a[2]}, 7, {a[2]}")
        k(f"v_add_u32 {a[2]}, {L_R2}, {a[2]}")
        k(f"s_lshl_b32 {sT0}, {self.sW}, 1")
        k(f"v_add_u32 {a[3]}, {sT0}, {a[0]}")
        k(f"v_and_b32 {a[4]}, 7, {a[3]}")
        k(f"v_lshl_add_u32 {vhw0}, {a[4]}, 4, {a[2]}")
        k(f"v_add_u32 {a[3]}, 1, {a[3]}")
        k(f"v_and_b32 {a[4]}, 7, {a[3]}")
        k(f"v_lshl_add_u32 {vhw1}, {a[4]}, 4, {a[2]}")
        k(f"v_lshrrev_b32 {a[2]}, 3, {self.vL}")
        k(f"v_lshlrev_b32 {a[2]}, 7, {a[2]}")
        k(f"s_lshl_b32 {sT0}, {self.sW}, 11")
        k(f"s_add_u32 {sT0}, {sT0}, {L_R2}")
        k(f"v_add_u32 {a[2]}, {sT0}, {a[2]}")
        k(f"v_lshrrev_b32 {a[3]}, 4, {self.vL}")
        k(f"v_add_u32 {a[3]}, {a[3]}, {self.vL}")
        k(f"v_and_b32 {a[4]}, 7, {a[3]}")
        k(f"v_lshl_add_u32 {vhr0}, {a[4]}, 4, {a[2]}")
        k(f"v_xor_b32 {vhr1}, 64, {vhr0}")
        self.sprinkle(None)
        self.bg(30)
        self.fv(self.vW1)
        self.fs(self.sW1g, self.sW1l, self.sW1)
        sAdd, sMul = S(), S(2)
        k(f"s_cmp_eq_u32 {self.sW}, 2")
        k(f"s_cselect_b32 {sAdd}, 1.0, 0")
        k(f"s_cmp_eq_u32 {self.sW}, 0")
        k(f"s_cselect_b32 {sMul[0]}, 1.0, {f2h(LOG2E)}")
        k(f"s_cmp_eq_u32 {self.sW}, 3")
        k(f"s_cselect_b32 {sMul[0]}, {f2h(1.0 / LOG2E)}, {sMul[0]}")
        k(f"s_mov_b32 {self.sSpin}, 0")
        self.vwait("mn")
        k("L_mn_chk:")
        self.tag_check(mn, 8, a, self.sP1, self.sP2, self.sMask, staged=False)
        k(f"v_cmp_ne_u32 vcc, 0, {a[0]}")
        k("s_cbranch_vccnz L_mn_rty")

        def mnretry():
            k("L_mn_rty:")
            for x in mnld:
                k(x)
            k("s_waitcnt vmcnt(0)")
            k(f"s_add_u32 {self.sSpin}, {self.sSpin}, 1")
            k(f"s_cmp_lt_u32 {self.sSpin}, {SPIN_MAX}")
            k("s_cbranch_scc1 L_mn_chk")
            self.timeout_block(8)
        self.post.append(mnretry)
        for i in range(0, 8, 2):
            k(f"v_pk_add_f32 {mn[i:i + 2]}, {mn[i:i + 2]}, {mn[8 + i:10 + i]}")
            k(f"v_pk_add_f32 {mn[16 + i:18 + i]}, {mn[16 + i:18 + i]}, {mn[24 + i:26 + i]}")
        for i in range(0, 8, 2):
            k(f"v_pk_add_f32 {mn[i:i + 2]}, {mn[i:i + 2]}, {mn[16 + i:18 + i]}")
        self.round_add(mn[0:8], sAdd, mn[8:12])
        for i in range(0, 8, 2):
            k(f"v_pk_mul_f32 {mn[i:i + 2]}, {mn[i:i + 2]}, {sMul} op_sel_hi:[1,0]")
        k(f"v_lshlrev_b32 {mn[8]}, 1, {self.vTid16}")
        k(f"v_add_u32 {mn[8]}, {L_MOD}, {mn[8]}")
        k(f"ds_write_b128 {mn[8]}, {mn[0:4]}")
        k(f"ds_write_b128 {mn[8]}, {mn[4:8]} offset:16")
        self.fs(sAdd, sMul, *sMN, self.sP1, self.sP2, self.sMask, self.sTag)
        self.fv(vmn)
        self.fv(kf, hf, base, sg, m0_, m1_, vm)
        self.stamp("PC consts done")
        d = V(8, 4)
        self.poll2("y2", d, vg, sYa, vg, sYb, 4)
        self.stamp("Y2 arrived")
        k(f"ds_write_b128 {vw}, {d[0:4]}")
        k(f"ds_write_b128 {vw}, {d[4:8]} offset:512")
        self.fv(mn)
        self.w2_queue()
        self.bg(3)
        k("s_waitcnt lgkmcnt(0)")
        k("s_barrier")
        A = d
        ny = V()
        for q in range(4):
            k(f"ds_read_b64 {A[2 * q:2 * q + 2]}, {vrd} offset:{2048 * (q // 2) + 512 * (q % 2)}")
        k(f"ds_read_u16 {ny}, {vny} offset:2")
        for vi, dst in enumerate((ga, sb, cb)):
            for ap in range(2):
                k(f"ds_read_b128 {dst[4 * ap:4 * ap + 4]}, {vml} offset:{2048 * vi + 32 * ap}")
        Dr, Di = V(16, 4), V(16, 4)
        M = "v_mfma_f32_32x32x16_bf16"
        k("s_waitcnt lgkmcnt(9)")
        k(f"{M} {Dr}, {A[0:4]}, {BAr[0:4]}, 0")
        k(f"{M} {Di}, {A[0:4]}, {BAi[0:4]}, 0")
        k("s_waitcnt lgkmcnt(7)")
        k(f"{M} {Dr}, {A[4:8]}, {BAr[4:8]}, {Dr}")
        k(f"{M} {Di}, {A[4:8]}, {BAi[4:8]}, {Di}")
        self.bg(2)
        k("s_waitcnt lgkmcnt(0)")
        k(f"v_lshlrev_b32 {ny}, 16, {ny}")
        k(f"v_fmac_f32 {Dr[0]}, {vsign}, {ny}")
        Aq = a
        for r in range(0, 16, 2):
            tt = c[4 * ((r // 2) % 2):4 * ((r // 2) % 2) + 4]
            self.cmul_pk(None, Di[r:r + 2], Dr[r:r + 2], Di[r:r + 2], TCc[r:r + 2], TCs[r:r + 2], False, tt)
            t_, hb = r // 4, (r // 2) % 2
            k(f"v_cvt_pk_bf16_f32 {Aq[4 * t_ + hb]}, {tt[0]}, {tt[1]}")
            k(f"v_cvt_pk_bf16_f32 {Aq[4 * t_ + 2 + hb]}, {Di[r]}, {Di[r + 1]}")
        Y = Dr
        for t_ in range(4):
            k(f"{M} {Y}, {Aq[4 * t_:4 * t_ + 4]}, {BB[4 * t_:4 * t_ + 4]}, {'0' if t_ == 0 else Y}")
        self.bg(3)
        for r in range(0, 16, 2):
            k(f"v_pk_fma_f32 {Y[r:r + 2]}, {Y[r:r + 2]}, {ga[r % 8:r % 8 + 2]}, {xf[r:r + 2]}")
        P = d
        for r in range(0, 16, 2):
            k(f"v_cvt_pk_bf16_f32 {P[r // 2]}, {Y[r]}, {Y[r + 1]}")
        t = c
        for row in range(2):
            k(f"v_pk_add_f32 {t[4 * row:4 * row + 2]}, {Y[8 * row:8 * row + 2]}, {Y[8 * row + 2:8 * row + 4]}")
            k(f"v_pk_add_f32 {t[4 * row + 2:4 * row + 4]}, {Y[8 * row + 4:8 * row + 6]}, {Y[8 * row + 6:8 * row + 8]}")
        for row in range(2):
            k(f"v_min_u32 {P[4 * row]}, -2, {P[4 * row]}")
            self.vm(f"buffer_store_dwordx4 {P[4 * row:4 * row + 4]}, {vx1}, {self.sWS}, {self.sX1o} offen offset:{1024 * row} sc1")
        self.sprinkle(96)
        for row in range(2):
            k(f"v_pk_add_f32 {t[4 * row:4 * row + 2]}, {t[4 * row:4 * row + 2]}, {t[4 * row + 2:4 * row + 4]}")
        for row in range(2):
            k(f"v_add_f32 {t[4 * row]}, {t[4 * row]}, {t[4 * row + 1]}")
        self.wave_sum63([t[0], t[4]])
        sM = [S(2), S(2)]
        for row in range(2):
            k(f"v_mul_f32 {t[4 * row]}, {f2h(-1.0 / 512)}, {t[4 * row]}")
        for row in range(2):
            k(f"v_readlane_b32 {sM[row][0]}, {t[4 * row]}, 63")
        for r in range(0, 16, 2):
            k(f"v_pk_add_f32 {Y[r:r + 2]}, {Y[r:r + 2]}, {sM[r // 8]} op_sel_hi:[1,0]")
        for row in range(2):
            k(f"v_pk_mul_f32 {t[4 * row:4 * row + 2]}, {Y[8 * row:8 * row + 2]}, {Y[8 * row:8 * row + 2]}")
        for j in range(2, 8, 2):
            for row in range(2):
                k(f"v_pk_fma_f32 {t[4 * row:4 * row + 2]}, {Y[8 * row + j:8 * row + j + 2]}, "
                  f"{Y[8 * row + j:8 * row + j + 2]}, {t[4 * row:4 * row + 2]}")
        for row in range(2):
            k(f"v_add_f32 {t[4 * row]}, {t[4 * row]}, {t[4 * row + 1]}")
        self.wave_sum63([t[0], t[4]])
        for row in range(2):
            k(f"v_mov_b32 {t[4 * row + 1]}, {f2h(1e-5)}")
            k(f"v_fmac_f32 {t[4 * row + 1]}, {f2h(1.0 / 512)}, {t[4 * row]}")
        for row in range(2):
            k(f"v_rsq_f32 {t[4 * row]}, {t[4 * row + 1]}")
        for row in range(2):
            k(f"v_readlane_b32 {sM[row][0]}, {t[4 * row]}, 63")
        for r in range(0, 16, 2):
            k(f"v_pk_mul_f32 {Y[r:r + 2]}, {Y[r:r + 2]}, {sM[r // 8]} op_sel_hi:[1,0]")
        for r in range(0, 16, 2):
            k(f"v_pk_fma_f32 {Y[r:r + 2]}, {Y[r:r + 2]}, {cb[r % 8:r % 8 + 2]}, {sb[r % 8:r % 8 + 2]}")
        Q = Di
        for r in range(0, 16, 2):
            k(f"v_cvt_pk_bf16_f32 {Q[r // 2]}, {Y[r]}, {Y[r + 1]}")
        self.sprinkle(None)
        k(f"ds_write_b128 {vhw0}, {Q[0:4]}")
        k(f"ds_write_b128 {vhw1}, {Q[4:8]}")
        k("s_waitcnt lgkmcnt(0)")
        k("s_barrier")
        k(f"ds_read_b128 {Q[8:12]}, {vhr0}")
        k(f"ds_read_b128 {Q[12:16]}, {vhr1} offset:1024")
        k(f"s_add_u32 {sT0}, {self.sH2o}, 4096")
        k("s_waitcnt lgkmcnt(1)")
        k(f"v_min_u32 {Q[8]}, -2, {Q[8]}")
        self.vm(f"buffer_store_dwordx4 {Q[8:12]}, {self.vH2o}, {self.sWS}, {self.sH2o} offen sc1")
        k("s_waitcnt lgkmcnt(0)")
        k(f"v_min_u32 {Q[12]}, -2, {Q[12]}")
        self.vm(f"buffer_store_dwordx4 {Q[12:16]}, {self.vH2o}, {self.sWS}, {sT0} offen sc1", "h2st")
        self.stamp("H2 stored")
        self.bg(9)
        self.vwait("h2st")
        self.stamp("H2 acked")
        self.fv(BAr, BAi, TCc, TCs, BB, ga, cb, sb, xf, a, c, vsign, vg, vw, vrd, vny, vx1, vhw0, vhw1, vhr0, vhr1,
                d, ny, Dr, Di, self.vH2o, self.vTid16, vml)
        self.fs(sYa, sYb, sM[0], sM[1])

    def check(self, name, g, regs):
        k = self.k
        t = self.vT0
        k(f"L_{name}_chk{g}:")
        self.vwait((name, g))
        k(f"v_max3_u32 {t}, {regs[0]}, {regs[1]}, {regs[2]}")
        for i in range(3, len(regs), 2):
            k(f"v_max3_u32 {t}, {t}, {regs[i]}, {regs[i + 1] if i + 1 < len(regs) else regs[i]}")
        k(f"v_cmp_eq_u32 vcc, -1, {t}")
        k(f"s_cbranch_vccnz L_{name}_rty{g}")

    def retries(self, name, loads, code):
        k = self.k
        for g, ld in enumerate(loads):
            k(f"L_{name}_rty{g}:")
            for x in ld:
                k(x)
            k("s_waitcnt vmcnt(0)")
            k(f"s_add_u32 {self.sSpin}, {self.sSpin}, 1")
            k(f"s_cmp_lt_u32 {self.sSpin}, {SPIN_MAX}")
            k(f"s_cbranch_scc1 L_{name}_chk{g}")
            k(f"s_branch L_{name}_dead")
        k(f"L_{name}_dead:")
        self.timeout_block(code)

    def silu_ops(self, x, e, q, packed):
        o = [f"v_exp_f32_e64 {e[j]}, -{x[j]}" for j in range(8)]
        if packed:
            o += [f"v_pk_add_f32 {e[j:j + 2]}, {e[j:j + 2]}, 1.0 op_sel_hi:[1,0]" for j in range(0, 8, 2)]
        else:
            o += [f"v_add_f32 {e[j]}, 1.0, {e[j]}" for j in range(8)]
        o += [f"v_rcp_f32 {e[j]}, {e[j]}" for j in range(8)]
        if packed:
            o += [f"v_pk_mul_f32 {e[j:j + 2]}, {e[j:j + 2]}, {x[j:j + 2]}" for j in range(0, 8, 2)]
        else:
            o += [f"v_mul_f32 {e[j]}, {e[j]}, {x[j]}" for j in range(8)]
        o += [f"v_cvt_pk_bf16_f32 {q[j]}, {e[2 * j]}, {e[2 * j + 1]}" for j in range(4)]
        o.append(f"v_min_u32 {q[0]}, -2, {q[0]}")
        return o

    def gemm1(self):
        k = self.k
        S, V = self.S, self.V
        sT0, sT1 = self.sT0, self.sT1
        PRE = 2
        Hb = V(128, 4)
        acc = [V(16, 4) for _ in range(3)]
        Af = [V(4, 4) for _ in range(4)]
        vA = [V(), V()]
        e = V(8, 4)
        P = V(24, 4)
        sH = [S() for _ in range(8)]
        sRot = S()
        k(f"s_lshl_b32 {sT0}, {self.sR}, 2")
        k(f"s_add_u32 {sT0}, {sT0}, {self.sW}")
        k(f"s_lshl_b32 {sT0}, {sT0}, 15")
        k(f"s_add_u32 {sT0}, {sT0}, {H2}")
        k(f"s_and_b32 {sRot}, {self.sY}, 7")
        for i in range(8):
            k(f"s_add_u32 {sT1}, {sRot}, {i}")
            k(f"s_and_b32 {sT1}, {sT1}, 7")
            k(f"s_lshl_b32 {sT1}, {sT1}, 12")
            k(f"s_add_u32 {sH[i]}, {sT0}, {sT1}")
        k(f"s_mov_b32 {self.sSpin}, 0")
        M = "v_mfma_f32_32x32x16_bf16"
        ld = [[f"buffer_load_dwordx4 {Hb[4 * t:4 * t + 4]}, {self.vL16}, {self.sWS}, {sH[g]} offen "
               f"offset:{1024 * (t % 4)} sc1" for t in range(4 * g, 4 * g + 4)] for g in range(8)]

        def abase(g):
            k(f"s_mul_i32 {sT1}, {sRot}, 12288")
            k(f"v_add_u32 {vA[g % 2]}, {sT1}, {self.vTrB}")
            k(f"s_add_u32 {sRot}, {sRot}, 1")
            k(f"s_and_b32 {sRot}, {sRot}, 7")

        def rd(dst, t, fb):
            off = (t % 4) * 3072 + fb * 64
            k(f"ds_read_b64_tr_b16 {dst[0:2]}, {vA[(t // 4) % 2]} offset:{off}")
            k(f"ds_read_b64_tr_b16 {dst[2:4]}, {vA[(t // 4) % 2]} offset:{off + 1536}")

        def store(i):
            so = self.sH1o if i < 4 else self.sH1o2
            return (f"buffer_store_dwordx4 {P[4 * i:4 * i + 4]}, {self.vL16}, {self.sWS}, {so} offen "
                    f"offset:{1024 * (i % 4)} sc1",)

        self.stamp("g1 start")
        for g in range(PRE):
            for x in ld[g]:
                self.vm(x, ("h2", g))
        abase(0)
        self.check("h2", 0, [Hb[4 * t] for t in range(4)])
        self.fstamp("g1 first")
        rd(Af[0], 0, 0)
        rd(Af[1], 0, 1)
        for t in range(32):
            g = t // 4
            if t % 4 == 2:
                abase(g + 1)
            for fb in range(2):
                if t < 31:
                    rd(Af[2 * ((t + 1) % 2) + fb], t + 1, fb)
                elif fb == 0:
                    rd(Af[0], 0, 2)
                else:
                    rd(Af[1], 1, 2)
                if fb == 0:
                    k("s_waitcnt lgkmcnt(2)")
                k(f"{M} {acc[fb]}, {Af[2 * (t % 2) + fb]}, {Hb[4 * t:4 * t + 4]}, {'0' if t == 0 else acc[fb]}")
                if fb == 0 and g + PRE < 8:
                    self.vm(ld[g + PRE][t % 4], ("h2", g + PRE))
                if fb == 0 and t % 4 == 3 and g < 7:
                    self.check("h2", g + 1, [Hb[4 * tt] for tt in range(4 * g + 4, 4 * g + 8)])
        self.stamp("g1 pass1")
        k(f"s_and_b32 {sT0}, {self.sY}, 15")
        k(f"s_cmp_ge_u32 {sT0}, 11")
        k("s_cbranch_scc1 L_twoblk")
        saved_vmq, saved_bgq = list(self.vmq), list(self.bgq)
        fill = []
        for i in range(4):
            fill += self.silu_ops(acc[i // 2][8 * (i % 2):8 * (i % 2) + 8], e, P[4 * i:4 * i + 4], False)
            fill.append(store(i))
        nfill = len(fill)
        done = 0
        for t in range(32):
            if t % 4 == 1 and t < 28:
                abase(t // 4 + 1)
            if t + 2 < 32:
                rd(Af[(t + 2) % 4], t + 2, 2)
            k(f"s_waitcnt lgkmcnt({4 if t + 2 < 32 else (2 if t == 30 else 0)})")
            k(f"{M} {acc[2]}, {Af[t % 4]}, {Hb[4 * t:4 * t + 4]}, {'0' if t == 0 else acc[2]}")
            if t >= 1:
                tgt = nfill * t // 31
                self.emit(fill[done:tgt])
                done = tgt
            if t % 2 == 1:
                self.bg(1)
        for i in range(4, 6):
            self.emit(self.silu_ops(acc[2][8 * (i % 2):8 * (i % 2) + 8], e, P[4 * i:4 * i + 4], True))
            self.emit([store(i)])
            self.bg(2)
        self.bg(50)
        k("s_branch L_g1done")
        k("L_twoblk:")
        self.vmq, self.bgq = saved_vmq, saved_bgq
        self.sprinkle(64)
        for i in range(4):
            self.emit(self.silu_ops(acc[i // 2][8 * (i % 2):8 * (i % 2) + 8], e, P[4 * i:4 * i + 4], True))
            self.emit([store(i)])
        self.sprinkle(None)
        self.bg(50)
        k("s_waitcnt lgkmcnt(0)")
        k("L_g1done:")
        self.stamp("H1 stored")
        self.post.append(lambda: self.retries("h2", ld, 5))
        self.fv(Hb, *acc, *Af, *vA, e, self.vTrB)
        self.tPend = P
        self.fs(*sH, sRot)

    def gemm2(self):
        k = self.k
        S, V = self.S, self.V
        sT0, sT1, sT2 = self.sT0, self.sT1, self.sT2
        PRE = 2
        self.fv(self.tPend)
        acc = [[V(16, 4) for _ in range(2)] for _ in range(2)]
        Hb = V(176, 4)
        x1 = V(8, 4)
        vB0, vB1, vx = V(), V(), V()
        sB = [S() for _ in range(22)]
        sRT, sX, sO, sOut, sGb = S(), S(), S(), S(), S()
        k("s_barrier")
        k(f"s_lshr_b32 {sT0}, {self.sY}, 3")
        k(f"s_lshl_b32 {sRT}, {self.sXc}, 2")
        k(f"s_add_u32 {sRT}, {sRT}, {sT0}")
        k(f"s_mul_i32 {sT0}, {sRT}, 172")
        k(f"s_add_u32 {sT0}, {sT0}, {self.sK0}")
        k(f"s_lshl_b32 {sT0}, {sT0}, 10")
        k(f"s_add_u32 {sT0}, {sT0}, {H1}")
        k(f"s_lshr_b32 {sT1}, {self.sW}, 1")
        k(f"s_mul_i32 {sT1}, {sT1}, {86 * 1024}")
        k(f"v_add_u32 {vB0}, {sT1}, {self.vL16}")
        k(f"s_sub_u32 {sT1}, {86 * 1024}, {sT1}")
        k(f"v_add_u32 {vB1}, {sT1}, {self.vL16}")
        for s_ in range(22):
            k(f"s_lshl_b32 {sT1}, {self.sKr}, 10")
            k(f"s_add_u32 {sB[s_]}, {sT0}, {sT1}")
            k(f"s_add_u32 {self.sKr}, {self.sKr}, 1")
            k(f"s_cmp_eq_u32 {self.sKr}, {self.sKn}")
            k(f"s_cselect_b32 {self.sKr}, 0, {self.sKr}")
        k(f"v_and_b32 {vx}, 31, {self.vL}")
        k(f"v_lshlrev_b32 {vx}, 10, {vx}")
        k(f"v_lshrrev_b32 {self.vT0}, 5, {self.vL}")
        k(f"v_lshl_add_u32 {vx}, {self.vT0}, 4, {vx}")
        k(f"s_and_b32 {sT0}, {self.sY}, 7")
        k(f"s_lshl_b32 {sT0}, {sT0}, 1")
        k(f"s_and_b32 {sT1}, {self.sW}, 1")
        k(f"s_add_u32 {sT0}, {sT0}, {sT1}")
        k(f"s_lshl_b32 {sGb}, {sT0}, 7")
        k(f"s_add_u32 {sGb}, {sGb}, {L_MOD + 6144}")
        k(f"s_lshl_b32 {sT0}, {sT0}, 6")
        k(f"s_lshr_b32 {sT1}, {self.sW}, 1")
        k(f"s_lshl_b32 {sT2}, {sRT}, 1")
        k(f"s_add_u32 {sT2}, {sT2}, {sT1}")
        k(f"s_lshl_b32 {sT2}, {sT2}, 15")
        k(f"s_add_u32 {sX}, {sT2}, {sT0}")
        k(f"s_add_u32 {sX}, {sX}, {X1}")
        k(f"s_add_u32 {sO}, {sX}, 32")
        k(f"s_lshl_b32 {sT1}, {sT1}, 10")
        k(f"s_add_u32 {sT1}, {sT1}, {sRT}")
        k(f"s_lshl_b32 {sT1}, {sT1}, 10")
        k(f"s_add_u32 {sOut}, {sT1}, {sT0}")
        self.vm(f"buffer_load_dwordx4 {x1[0:4]}, {vx}, {self.sWS}, {sX} offen sc1")
        self.vm(f"buffer_load_dwordx4 {x1[4:8]}, {vx}, {self.sWS}, {sO} offen sc1")
        k(f"s_mov_b32 {self.sSpin}, 0")
        self.vdrain()
        self.stamp("H1 acked")
        M = "v_mfma_f32_32x32x16_bf16"
        ld = [[f"buffer_load_dwordx4 {Hb[8 * s_ + 4 * nb:8 * s_ + 4 * nb + 4]}, {vB1 if nb else vB0}, {self.sWS}, "
               f"{sB[s_]} offen sc1" for s_ in (2 * g, 2 * g + 1) for nb in range(2)] for g in range(11)]
        for g in range(PRE):
            for x in ld[g]:
                self.vm(x, ("h1", g))
        self.check("h1", 0, [Hb[4 * i] for i in range(4)])
        self.fstamp("g2 first")
        vred = self.vT0
        TAIL = 4
        order = [(1, 0), (0, 1), (1, 1), (0, 0)]

        def mm(s_, i, j):
            k(f"{M} {acc[i][j]}, {self.aW2[8 * s_ + 4 * i:8 * s_ + 4 * i + 4]}, "
              f"{Hb[8 * s_ + 4 * j:8 * s_ + 4 * j + 4]}, {'0' if s_ == 1 else acc[i][j]}")

        seq = [1, 0] + list(range(2, 22))
        for n_, s_ in enumerate(seq[:22 - TAIL]):
            g = n_ // 2
            if s_ == 0:
                k(f"s_cmp_ge_u32 {self.sW}, 2")
                k("s_cbranch_scc1 L_noslot")
            for c_, (i, j) in enumerate(order):
                mm(s_, i, j)
                if s_ == 0:
                    continue
                if c_ < 2 and g + PRE < 11:
                    self.vm(ld[g + PRE][2 * (n_ % 2) + c_], ("h1", g + PRE))
                if n_ == 0 and c_ >= 2:
                    self.vm(ld[PRE][c_], ("h1", PRE))
                if c_ == 2 and n_ % 2 == 1 and g < 10:
                    self.check("h1", g + 1, [Hb[16 * (g + 1) + 4 * ii] for ii in range(4)])
            if s_ == 0:
                k("L_noslot:")
                self.check("h1", 1, [Hb[16 + 4 * ii] for ii in range(4)])
        tail = seq[22 - TAIL:]
        for s_ in tail[:2]:
            for (i, j) in order[:3]:
                mm(s_, i, j)
        self.check("h1", 10, [Hb[160 + 4 * ii] for ii in range(4)])
        for (i, j) in order[:3]:
            for s_ in tail[2:]:
                mm(s_, i, j)
        gb = Hb[8:24]
        xf = Hb[96:112]
        vgb, vo = Hb[25], Hb[26]
        vw = [Hb[27], Hb[28], Hb[29]]
        for n_, (i, j) in enumerate(order[:3]):
            k(f"s_xor_b32 {sT0}, {self.sW}, {i + 2 * j}")
            k(f"s_mul_i32 {sT0}, {sT0}, 12288")
            k(f"s_add_u32 {sT0}, {sT0}, {4096 * (i + 2 * j - 1)}")
            k(f"v_add_u32 {vw[n_]}, {sT0}, {self.vL16}")
        mm(tail[0], 0, 0)
        k(f"v_and_b32 {vgb}, 16, {vx}")
        k(f"v_and_b32 {vo}, 31, {self.vL}")
        k(f"v_lshl_add_u32 {vo}, {vo}, 15, {vgb}")
        k(f"v_add_u32 {vgb}, {sGb}, {vgb}")
        for n_, (i, j) in enumerate(order[:3]):
            for r in range(4):
                k(f"ds_write_b128 {vw[n_]}, {acc[i][j][4 * r:4 * r + 4]} offset:{1024 * r}")
            mm(tail[n_ + 1], 0, 0)
        self.stamp("g2 mfma")
        self.post.append(lambda: self.retries("h1", ld, 6))
        for a_ in range(4):
            k(f"ds_read_b128 {gb[4 * a_:4 * a_ + 4]}, {vgb} offset:{32 * a_}")
        k(f"s_mul_i32 {sT0}, {self.sW}, 12288")
        k(f"v_add_u32 {vw[0]}, {sT0}, {self.vL16}")
        k("L_x1_chk:")
        k(f"v_max_u32 {self.vT0}, {x1[0]}, {x1[4]}")
        k(f"v_cmp_eq_u32 vcc, -1, {self.vT0}")
        k("s_cbranch_vccnz L_x1_rty")

        def x1retry():
            k("L_x1_rty:")
            k(f"buffer_load_dwordx4 {x1[0:4]}, {vx}, {self.sWS}, {sX} offen sc1")
            k(f"buffer_load_dwordx4 {x1[4:8]}, {vx}, {self.sWS}, {sO} offen sc1")
            k("s_waitcnt vmcnt(0)")
            k(f"s_add_u32 {self.sSpin}, {self.sSpin}, 1")
            k(f"s_cmp_lt_u32 {self.sSpin}, {SPIN_MAX}")
            k("s_cbranch_scc1 L_x1_chk")
            self.timeout_block(7)
        self.post.append(x1retry)
        for i in range(8):
            k(f"v_lshlrev_b32 {xf[2 * i]}, 16, {x1[i]}")
            k(f"v_and_b32 {xf[2 * i + 1]}, 0xffff0000, {x1[i]}")
        F = acc[0][0]
        R = Hb[32:80]
        k("s_waitcnt lgkmcnt(0)")
        k("s_barrier")
        for j in range(3):
            for i in range(4):
                k(f"ds_read_b128 {R[16 * j + 4 * i:16 * j + 4 * i + 4]}, {vw[0]} offset:{4096 * j + 1024 * i}")
        for j in range(3):
            k(f"s_waitcnt lgkmcnt({8 - 4 * j})")
            for r in range(0, 16, 2):
                k(f"v_pk_add_f32 {F[r:r + 2]}, {F[r:r + 2]}, {R[16 * j + r:16 * j + r + 2]}")
        Pq = Hb[112:120]
        for u in range(2):
            for r in range(8 * u, 8 * u + 8, 2):
                k(f"v_pk_fma_f32 {F[r:r + 2]}, {F[r:r + 2]}, {gb[r:r + 2]}, {xf[r:r + 2]}")
            for r in range(8 * u, 8 * u + 8, 2):
                k(f"v_cvt_pk_bf16_f32 {Pq[r // 2]}, {F[r]}, {F[r + 1]}")
            k(f"v_permlane32_swap_b32 {Pq[4 * u]}, {Pq[4 * u + 2]}")
            k(f"v_permlane32_swap_b32 {Pq[4 * u + 1]}, {Pq[4 * u + 3]}")
            k(f"buffer_store_dwordx4 {Pq[4 * u:4 * u + 4]}, {vo}, {self.sOUT}, {sOut} offen offset:{32 * u}")
        self.stamp("end")

    def build(self):
        k = self.k
        self.prologue()
        self.post = []
        phases = [self.phase0, self.phaseA, self.phaseB, self.phaseC, self.gemm1, self.gemm2]
        for i, p in enumerate(phases):
            if i > self.stop:
                break
            p()
            if i < 5:
                self.flush_stamps()
        self.finish()
        for f in self.post:
            f()
        k("L_exit:")
        k("s_endpgm")
        txt, desc = k.emit()
        hdr = open('adaLN_cond__spectral_gfnet__dense_activation_silu__prompt.s.ref').read()
        hdr = "".join(l + "\n" for l in hdr.split("\n") if l.startswith(";") and "@launch" not in l and "Override" not in l
                      and "grid=ceil" not in l)
        hdr += f"; @launch grid=(256,1,1) block=(256,1,1) lds={LDS_SIZE}\n"
        return hdr + '.amdgcn_target "amdgcn-amd-amdhsa--gfx950"\n' + txt + desc


if __name__ == "__main__":
    out = sys.argv[1] if len(sys.argv) > 1 else "k.s"
    stop = int(sys.argv[2]) if len(sys.argv) > 2 else 99
    stamps = len(sys.argv) > 3 and sys.argv[3] == "1"
    g = Gen(stop, stamps)
    g.fine = len(sys.argv) > 4 and sys.argv[4] == "1"
    s = g.build()
    open(out, "w").write(s)
    open(out + ".names", "w").write("\n".join(g.names))
    print(f"wrote {out}: vgpr {g.k.nvgpr} nfv {g.k.nfv} sgpr {g.k.s.high} nops {g.k.nops_inserted} stamps {g.nstamp}")
```
